```python
import torch

def _softmax(x, axis=-1):
    return torch.softmax(x, dim=axis)
def _gelu(x):
    return torch.nn.functional.gelu(x, approximate="tanh")
def _silu(x):
    return torch.nn.functional.silu(x)
def _sigmoid(x):
    return torch.sigmoid(x)
def _layernorm(x, axis=-1, eps=1e-5):
    m = x.mean(dim=axis, keepdim=True)
    v = x.var(dim=axis, keepdim=True, unbiased=False)
    return (x - m) / torch.sqrt(v + eps)
def _scatter_add(tgt, idx, src, axis=0):
    return tgt.clone().index_add_(axis, idx, src)
def _segment_sum(src, seg, n):
    out = torch.zeros((n,) + src.shape[1:], dtype=src.dtype)
    return out.index_add_(0, seg, src)
def _pad(x, pw):
    flat = tuple(v for pair in reversed(pw) for v in pair)
    return torch.nn.functional.pad(x, flat)

kernel_name = 'standalone__kv_cache_quant_int4_int2_kv_with_per_channel_or_per_token_scales__decode'

def setup_inputs():

    _w = (lambda a: (lambda t: t.to(torch.bfloat16) if t.is_floating_point() else t)(torch.as_tensor(a)))
    B = 1
    Sq = 1
    Skv = 16384
    Hq = 32
    Hkv = 8
    Dh = 128
    bits = 3
    G = -1
    if G <= 0 or G >= Skv:
        G = max(1, Skv // 2)
    Skv = (Skv // G) * G
    ngk = Skv // G
    qmax = (1 << bits) - 1
    return {
        "q": _w((lambda *s: torch.randn(*s, dtype=torch.bfloat16) * 1.6)(B, Hq, Sq, Dh)),
        "qk": _w(torch.randint(0, qmax + 1, (B, Hkv, Skv, Dh)).to(torch.int32)),
        "qv": _w(torch.randint(0, qmax + 1, (B, Hkv, Skv, Dh)).to(torch.int32)),
        "k_scales": _w(torch.abs((lambda *s: torch.randn(*s, dtype=torch.bfloat16) * 1.6)(B, Hkv, ngk, Dh)) * 0.05 + 0.02),
        "k_zeros": _w((lambda *s: torch.randn(*s, dtype=torch.bfloat16) * 1.6)(B, Hkv, ngk, Dh) + float(qmax) / 2.0),
        "v_scales": _w(torch.abs((lambda *s: torch.randn(*s, dtype=torch.bfloat16) * 0.05)(B, Hkv, Skv, 1)) * 0.05 + 0.02),
        "v_zeros": _w((lambda *s: torch.randn(*s, dtype=torch.bfloat16) * 0.05)(B, Hkv, Skv, 1) + float(qmax) / 2.0),
    }

def reference(q, qk, qv, k_scales, k_zeros, v_scales, v_zeros):
    B, Hq, Sq, Dh = q.shape
    Hkv, Skv = qk.shape[1], qk.shape[2]
    ngk = k_scales.shape[2]
    G = Skv // ngk
    ks = (lambda x, n, axis: torch.repeat_interleave(x, n, dim=axis))(k_scales, G, axis=2)
    kz = (lambda x, n, axis: torch.repeat_interleave(x, n, dim=axis))(k_zeros, G, axis=2)
    k = ((lambda x, dt: x.to(dt))(qk, q.dtype) - kz) * ks
    v = ((lambda x, dt: x.to(dt))(qv, q.dtype) - v_zeros) * v_scales
    rep = Hq // Hkv
    if rep > 1:
        k = (lambda x, n, axis: torch.repeat_interleave(x, n, dim=axis))(k, rep, axis=1)
        v = (lambda x, n, axis: torch.repeat_interleave(x, n, dim=axis))(v, rep, axis=1)
    scale = float(Dh) ** -0.5
    logits = torch.einsum("bhqd,bhkd->bhqk", q, k) * scale
    p = _softmax(logits, axis=-1)
    o = torch.einsum("bhqk,bhkd->bhqd", p, v)
    return o
```

```python
import re
TRANS = ("v_exp_f32","v_log_f32","v_rcp_f32","v_rsq_f32","v_sqrt_f32","v_sin_f32","v_cos_f32")
def regs_of(tok):
    tok = tok.strip()
    tok = tok.lstrip("-")
    if tok.startswith("abs(") or tok.startswith("|"):
        tok = tok.replace("abs(","").replace(")","").replace("|","")
    m = re.fullmatch(r"([vsa])\[(\d+):(\d+)\]", tok)
    if m: return [(m.group(1), i) for i in range(int(m.group(2)), int(m.group(3))+1)]
    m = re.fullmatch(r"([vsa])(\d+)", tok)
    if m: return [(m.group(1), int(m.group(2)))]
    if tok == "vcc": return [("s","vcc")]
    if tok == "exec": return [("s","exec")]
    if tok == "m0": return [("s","m0")]
    return []
class Ins:
    def __init__(self, text):
        self.text = text
        t = text.split(";")[0].strip()
        self.label = t.endswith(":")
        self.directive = t.startswith(".")
        self.op = t.split()[0] if t else ""
        rest = t[len(self.op):].strip()
        ops = [o.strip() for o in rest.split(",")] if rest else []
        mods = ""
        if ops:
            parts = ops[-1].split()
            if parts:
                ops[-1] = parts[0]; mods = " ".join(parts[1:])
        self.ops, self.mods = ops, mods
        op = self.op
        self.mfma = op.startswith("v_mfma")
        self.valu = op.startswith("v_") and not self.mfma
        self.trans = any(op.startswith(x) for x in TRANS)
        self.dpp = "dpp" in op or "quad_perm" in mods or "row_" in mods
        self.permlane = op.startswith("v_permlane")
        self.readlane = op.startswith("v_readlane") or op.startswith("v_readfirstlane")
        self.vmem = op.startswith("global_") or op.startswith("buffer_")
        self.ds = op.startswith("ds_")
        self.salu = op.startswith("s_")
        self.store = self.vmem and ("store" in op or "atomic" in op)
        w, r = [], []
        R = [regs_of(o) for o in ops]
        if self.label or self.directive or not op: pass
        elif self.mfma:
            w = R[0]; self.A, self.B, self.C = R[1], R[2], R[3]; r = R[1]+R[2]+R[3]
        elif self.permlane and "swap" in op:
            w = R[0]+R[1]; r = R[0]+R[1]
        elif op.startswith("v_cmp"):
            w = R[0]; r = sum(R[1:], [])
        elif op.startswith("v_add_co") or op.startswith("v_addc_co") or op.startswith("v_sub_co"):
            w = R[0]+R[1]; r = sum(R[2:], [])
        elif op.startswith("v_cndmask"):
            w = R[0]; r = sum(R[1:], [])
        elif self.valu:
            w = R[0]; r = sum(R[1:], [])
            if op.startswith("v_fmac") or op.startswith("v_writelane") or self.dpp: r = r + R[0]
        elif self.vmem:
            if "load" in op:
                if "lds" in self.mods or "_lds_" in op: r = sum(R, [])
                else: w = R[0]; r = sum(R[1:], [])
            elif "atomic" in op and "sc0" in self.mods:
                w = R[0]; r = sum(R[1:], [])
            else: r = sum(R, [])
        elif self.ds:
            if op.startswith("ds_read") or op.startswith("ds_bpermute") or op.startswith("ds_swizzle") or op.startswith("ds_permute"):
                w = R[0]; r = sum(R[1:], [])
            else: r = sum(R, [])
        elif self.salu:
            if op.startswith("s_cmp") or op.startswith("s_waitcnt") or op.startswith("s_cbranch") or op in ("s_barrier","s_nop","s_endpgm","s_branch","s_setprio","s_sleep"):
                r = sum(R, [])
            else:
                w = R[0] if R else []; r = sum(R[1:], [])
        self.w, self.r = set(w), set(r)
    def states(self):
        if self.label or self.directive or not self.op: return 0
        if self.op == "s_nop": return int(self.ops[0]) + 1
        return 1
def need(p, c):
    n = 0
    vw = {x for x in p.w if x[0] in "va"}
    sw = {x for x in p.w if x[0] == "s"}
    if p.valu and vw:
        if c.mfma and vw & c.r: n = max(n, 2)
        if c.dpp and vw & c.r: n = max(n, 2)
        if c.permlane and vw & c.r: n = max(n, 2)
        if c.readlane and vw & c.r: n = max(n, 1)
        if p.trans and c.valu and not c.trans and vw & c.r: n = max(n, 1)
        if p.trans and c.valu and c.trans and vw & c.r: n = max(n, 1)
    if p.valu and sw:
        if c.valu and sw & c.r: n = max(n, 4 if c.readlane else 2)
        if c.vmem and sw & c.r: n = max(n, 5)
        if c.salu and sw & c.r: n = max(n, 4)
        if c.mfma and ("s","exec") in sw: n = max(n, 4)
    if p.mfma:
        passes = 8 if "32x32" in p.op else 4
        d = p.w
        raw = {4: 8, 8: 12}[passes]
        if (c.valu or c.vmem or c.ds) and d & (c.r | c.w): n = max(n, raw)
        if c.mfma:
            if d & (set(c.A) | set(c.B)): n = max(n, raw)
            if d & set(c.C) and set(c.C) != d: n = max(n, {4: 6, 8: 10}[passes])
            if d & c.w and c.w != d: n = max(n, raw)
        if c.valu and set(p.C) & c.w: n = max(n, {4: 3, 8: 7}[passes])
    if p.store and ("x4" in p.op or "x3" in p.op):
        if c.valu and (p.r & c.w): n = max(n, 2)
        elif (p.r & {x for x in c.w if x[0] in "va"}): n = max(n, 1)
    if p.salu and ("s","m0") in p.w and (c.vmem and "lds" in c.text): n = max(n, 1)
    return n
class Asm:
    def __init__(self): self.L = []
    def __call__(self, text):
        for line in text.split("\n"):
            line = line.strip()
            if line and not line.startswith(";"): self.L.append(line)
    def finalize(self):
        ins = [Ins(x) for x in self.L]
        out = []
        pads = 0
        for c in ins:
            if c.label or c.directive:
                out.append(c); continue
            req = 0
            dist = 0
            for p in reversed(out):
                if dist >= 20: break
                if not (p.label or p.directive):
                    k = need(p, c) - dist
                    req = max(req, k)
                dist += p.states()
            if req > 0:
                out.append(Ins(f"s_nop {req-1}")); pads += req
            out.append(c)
        self.pads = pads
        return "\n".join((x.text if (x.label or x.directive) else "    " + x.text) for x in out) + "\n"
```

```python
import sys
from asmlib import Asm
from build import build, KN
BASE = "standalone__kv_cache_quant_int4_int2_kv_with_per_channel_or_per_token_scales__decode"
K2 = "combine_kernel"
HEAD = open("cdna_kernels/" + BASE + ".s.ref").read().split("; Override launch")[0]
SCALE_LOG2E = 0x3e0293ee
import struct, math
SCALE_LOG2E = struct.unpack("<I", struct.pack("<f", (128 ** -0.5) * math.log2(math.e)))[0]
STATS_OFF = 0x80000

class VM:
    def __init__(self, a): self.a = a; self.q = []; self.done = set()
    def issue(self, text, tag): self.a(text); self.q.append(tag)
    def wait(self, tag):
        if tag in self.done: return
        i = self.q.index(tag)
        n = len(self.q) - 1 - i
        assert n <= 63
        self.a(f"s_waitcnt vmcnt({n})")
        for t in self.q[:i+1]: self.done.add(t)
        self.q = self.q[i+1:]

def kd(name, nv, ns=96):
    return f""".amdhsa_kernel {name}
  .amdhsa_next_free_vgpr {nv}
  .amdhsa_next_free_sgpr {ns}
  .amdhsa_accum_offset {(nv+3)//4*4}
  .amdhsa_group_segment_fixed_size 0
  .amdhsa_kernarg_size 80
  .amdhsa_user_sgpr_count 2
  .amdhsa_user_sgpr_kernarg_segment_ptr 1
  .amdhsa_system_sgpr_workgroup_id_x 1
.end_amdhsa_kernel
"""

def final_merge(a, s_hq, s_ws, s_out, vl, vb, ldf):
    vst, vp, vt = vb, vb + 4, vb + 68
    va = vt + 8
    a(f"v_and_b32 v{vt}, 31, v{vl}")
    a(f"v_lshlrev_b32 v{vt}, 3, v{vt}")
    a(f"s_lshl_b32 s30, {s_hq}, 8")
    a(f"s_add_u32 s30, s30, {STATS_OFF}")
    a(f"v_add_u32 v{vt}, s30, v{vt}")
    a(f"global_load_dwordx2 v[{vst}:{vst+1}], v{vt}, {s_ws} {ldf}")
    a(f"s_lshl_b32 s30, {s_hq}, 14")
    a(f"v_lshlrev_b32 v{va}, 3, v{vl}")
    a(f"v_add_u32 v{va}, s30, v{va}")
    for k in range(1, 4):
        a(f"v_add_u32 v{va+k}, {4096*k}, v{va}")
    for i in range(32):
        a(f"global_load_dwordx2 v[{vp+2*i}:{vp+2*i+1}], v{va+i//8}, {s_ws} offset:{(i%8)*512} {ldf}")
    a("s_waitcnt vmcnt(32)")
    m, t, f, lf = vt, vt+1, vt+2, vt+3
    a(f"v_max_f32_dpp v{m}, v{vst}, v{vst} row_ror:8 row_mask:0xf bank_mask:0xf")
    for r in (4, 2, 1):
        a(f"v_max_f32_dpp v{m}, v{m}, v{m} row_ror:{r} row_mask:0xf bank_mask:0xf")
    a(f"v_mov_b32 v{t}, v{m}")
    a(f"v_permlane16_swap_b32 v{m}, v{t}")
    a(f"v_max_f32 v{m}, v{m}, v{t}")
    a(f"v_sub_f32 v{f}, v{vst}, v{m}")
    a(f"v_exp_f32 v{f}, v{f}")
    a(f"v_mul_f32 v{lf}, v{f}, v{vst+1}")
    for r in (8, 4, 2, 1):
        a(f"v_add_f32_dpp v{lf}, v{lf}, v{lf} row_ror:{r} row_mask:0xf bank_mask:0xf")
    a(f"v_mov_b32 v{t}, v{lf}")
    a(f"v_permlane16_swap_b32 v{lf}, v{t}")
    a(f"v_add_f32 v{lf}, v{lf}, v{t}")
    a(f"v_rcp_f32 v{lf}, v{lf}")
    a(f"v_mul_f32 v{f}, v{f}, v{lf}")
    for i in range(32):
        a(f"v_readlane_b32 s{32+i}, v{f}, {i}")
    o0, o1 = vt+4, vt+5
    for i in range(32):
        a(f"s_waitcnt vmcnt({31-i})")
        if i == 0:
            a(f"v_mul_f32 v{o0}, s32, v{vp}")
            a(f"v_mul_f32 v{o1}, s32, v{vp+1}")
        else:
            a(f"v_fmac_f32 v{o0}, s{32+i}, v{vp+2*i}")
            a(f"v_fmac_f32 v{o1}, s{32+i}, v{vp+2*i+1}")
    a(f"v_cvt_pk_bf16_f32 v{o0}, v{o0}, v{o1}")
    a(f"s_lshl_b32 s30, {s_hq}, 8")
    a(f"v_lshlrev_b32 v{t}, 2, v{vl}")
    a(f"v_add_u32 v{t}, s30, v{t}")
    a(f"global_store_dword v{t}, v{o0}, {s_out}")

def gen(name, ldf="nt", tail="two", stamps=False):
    a = Asm()
    vm = VM(a)
    nst = [0]
    def stamp():
        if stamps:
            i = nst[0]; nst[0] += 1
            a(f"s_memrealtime s[{64+2*i}:{65+2*i}]")
    def stamp_out():
        if stamps:
            stamp()
            a("s_waitcnt lgkmcnt(0)")
            a("s_mov_b64 exec, 1")
            a("s_lshl_b32 s60, s2, 3")
            a("s_add_u32 s60, s60, s24")
            a("s_lshl_b32 s60, s60, 6")
            a("s_add_u32 s60, s60, 0x100000")
            a("v_mov_b32 v250, s60")
            for i in range(nst[0]):
                a(f"v_mov_b32 v251, s{64+2*i}")
                a(f"global_store_dword v250, v251, s[22:23] offset:{4*i}")
                a("s_nop 1")
            a("s_mov_b64 exec, -1")
    vL, vKo0, vKo1, vVo0, vVo1, vSo, vQo, vZo = 1, 2, 3, 4, 5, 6, 7, 8
    vT = 9
    QB = 16
    KZ = 20
    QR, KSR = 24, 28
    VS, VZ = 32, 40
    S = 48
    RA, RB, RC = 64, 128, 192
    CC, MM, LL = 12, 13, 14
    NV = 256
    a("s_cmp_ge_u32 s2, 256")
    a("s_cbranch_scc1 L_end")
    stamp()
    a("s_load_dwordx16 s[4:19], s[0:1], 0")
    a("s_load_dwordx4 s[20:23], s[0:1], 64")
    a(f"v_and_b32 v{vL}, 63, v0")
    a(f"v_lshrrev_b32 v{vT}, 6, v0")
    a(f"v_readfirstlane_b32 s24, v{vT}")
    a(f"v_lshrrev_b32 v{vT}, 4, v{vL}")
    a(f"v_and_b32 v{vT+1}, 3, v{vL}")
    a(f"v_bfe_u32 v{vT+2}, v{vL}, 2, 2")
    a(f"v_and_b32 v{vT+3}, 15, v{vL}")
    a("s_lshl_b32 s25, s2, 9")
    a("s_lshl_b32 s26, s24, 6")
    a("s_add_u32 s25, s25, s26")
    a("s_lshl_b32 s26, s25, 9")
    a(f"v_lshl_add_u32 v{vT+4}, v{vT}, 2, v{vT+1}")
    a(f"v_lshlrev_b32 v{vKo0}, 4, v{vT+4}")
    a(f"v_lshl_add_u32 v{vKo0}, v{vT+2}, 12, v{vKo0}")
    a(f"v_add_u32 v{vKo0}, s26, v{vKo0}")
    a(f"v_add_u32 v{vKo1}, 0x4000, v{vKo0}")
    a(f"v_lshlrev_b32 v{vVo0}, 4, v{vT+3}")
    a(f"v_lshl_add_u32 v{vVo0}, v{vT}, 12, v{vVo0}")
    a(f"v_add_u32 v{vVo0}, s26, v{vVo0}")
    a(f"v_add_u32 v{vVo1}, 0x4000, v{vVo0}")
    a("s_lshl_b32 s27, s25, 1")
    a(f"v_lshlrev_b32 v{vSo}, 4, v{vT}")
    a(f"v_add_u32 v{vSo}, s27, v{vSo}")
    a(f"v_lshlrev_b32 v{vZo}, 3, v{vT+4}")
    a(f"v_lshl_add_u32 v{vQo}, v{vT+2}, 8, v{vZo}")
    a("s_lshr_b32 s28, s2, 5")
    a("s_lshl_b32 s29, s28, 10")
    a(f"v_add_u32 v{vQo}, s29, v{vQo}")
    a("s_lshr_b32 s29, s2, 4")
    a("s_lshl_b32 s29, s29, 8")
    a(f"v_add_u32 v{vZo}, s29, v{vZo}")
    a("s_mov_b32 s30, 0xaaaaaaaa")
    a("s_mov_b32 s31, 0xaaaaaaaa")
    a("s_waitcnt lgkmcnt(0)")
    stamp()
    for i in range(2):
        vm.issue(f"global_load_dwordx2 v[{QR+2*i}:{QR+2*i+1}], v{vQo}, s[4:5] offset:{128*i}", f"q{i}")
        vm.issue(f"global_load_dwordx2 v[{KSR+2*i}:{KSR+2*i+1}], v{vZo}, s[10:11] offset:{128*i}", f"ks{i}")
        vm.issue(f"global_load_dwordx2 v[{KZ+2*i}:{KZ+2*i+1}], v{vZo}, s[12:13] offset:{128*i}", f"kz{i}")
    def kload(t, e, i):
        r = (RA, RB)[t] + 8*e + 4*i
        vm.issue(f"global_load_dwordx4 v[{r}:{r+3}], v{(vKo0, vKo1)[t]}, s[6:7] offset:{e*512+i*256} {ldf}", f"k{t}_{e}_{i}")
    def vload(t, k):
        half, e = k // 8, k % 8
        r = (RC, RA)[t] + 4*k
        vm.issue(f"global_load_dwordx4 v[{r}:{r+3}], v{(vVo0, vVo1)[t]}, s[8:9] offset:{e*512+half*256} {ldf}", f"v{t}_{k}")
    for e in range(8):
        kload(0, e, 0); kload(0, e, 1)
    for t in range(2):
        vm.issue(f"global_load_dwordx4 v[{VS+4*t}:{VS+4*t+3}], v{vSo}, s[14:15] offset:{64*t}", f"vs{t}")
        vm.issue(f"global_load_dwordx4 v[{VZ+4*t}:{VZ+4*t+3}], v{vSo}, s[16:17] offset:{64*t}", f"vz{t}")
    for e in range(8):
        kload(1, e, 0); kload(1, e, 1)
    for k in range(16):
        vload(0, k)
    stamp()
    vm.wait("kz1")
    stamp()
    a(f"s_mov_b32 s26, {SCALE_LOG2E}")
    for k in range(4):
        lo, hi = S + 2*k, S + 2*k + 1
        a(f"v_lshlrev_b32 v{lo}, 16, v{QR+k}")
        a(f"v_and_b32 v{hi}, 0xffff0000, v{QR+k}")
        a(f"v_lshlrev_b32 v{S+8}, 16, v{KSR+k}")
        a(f"v_and_b32 v{S+9}, 0xffff0000, v{KSR+k}")
        a(f"v_mul_f32 v{lo}, v{lo}, v{S+8}")
        a(f"v_mul_f32 v{hi}, v{hi}, v{S+9}")
        a(f"v_mul_f32 v{lo}, s26, v{lo}")
        a(f"v_mul_f32 v{hi}, s26, v{hi}")
        a(f"v_cvt_pk_bf16_f32 v{QB+k}, v{lo}, v{hi}")
    def post(D, dst):
        a(f"v_cndmask_b32 v{vT}, v{D}, v{D+1}, s[30:31]")
        a(f"v_cndmask_b32 v{vT+1}, v{D+2}, v{D+3}, s[30:31]")
        a(f"v_add_f32_dpp v{vT}, v{vT+1}, v{vT} quad_perm:[2,3,0,1] row_mask:0xf bank_mask:0xf")
        a(f"v_add_f32_dpp v{dst}, v{vT}, v{vT} quad_perm:[1,0,3,2] row_mask:0xf bank_mask:0xf")
    a(f"v_mfma_f32_16x16x32_bf16 v[{QR}:{QR+3}], v[{KZ}:{KZ+3}], v[{QB}:{QB+3}], 0")
    pending = (QR, CC)
    for t in range(2):
        R = (RA, RB)[t]
        for e in range(8):
            r = R + 8*e
            vm.wait(f"k{t}_{e}_1")
            if e == 0: stamp()
            for x in range(8): a(f"v_cvt_f32_i32 v{r+x}, v{r+x}")
            for k in range(4): a(f"v_cvt_pk_bf16_f32 v{r+k}, v{r+2*k}, v{r+2*k+1}")
            post(*pending[:2])
            if len(pending) > 2:
                ee = pending[2]
                vload(1, 2*ee); vload(1, 2*ee+1)
            a(f"v_mfma_f32_16x16x32_bf16 v[{r+4}:{r+7}], v[{r}:{r+3}], v[{QB}:{QB+3}], 0")
            pending = (r+4, S + 8*t + e, e) if t == 0 else (r+4, S + 8*t + e)
    post(*pending[:2])
    stamp()
    a(f"v_max3_f32 v{MM}, v{S}, v{S+1}, v{S+2}")
    for k in range(3, 15, 2):
        a(f"v_max3_f32 v{MM}, v{MM}, v{S+k}, v{S+k+1}")
    a(f"v_max_f32 v{MM}, v{MM}, v{S+15}")
    for sw in ("v_permlane16_swap_b32", "v_permlane32_swap_b32"):
        a(f"v_mov_b32 v{vT}, v{MM}")
        a(f"{sw} v{MM}, v{vT}")
        a(f"v_max_f32 v{MM}, v{MM}, v{vT}")
    for k in range(16): a(f"v_sub_f32 v{S+k}, v{S+k}, v{MM}")
    for k in range(16): a(f"v_exp_f32 v{S+k}, v{S+k}")
    a(f"v_add_f32 v{LL}, v{S}, v{S+1}")
    for k in range(2, 16): a(f"v_add_f32 v{LL}, v{LL}, v{S+k}")
    vm.wait("vz1")
    W = KZ
    for t in range(2):
        Wt = (KZ, QR)[t]
        for k in range(4):
            a(f"v_lshlrev_b32 v{vT}, 16, v{VS+4*t+k}")
            a(f"v_and_b32 v{vT+1}, 0xffff0000, v{VS+4*t+k}")
            a(f"v_mul_f32 v{vT}, v{vT}, v{S+8*t+2*k}")
            a(f"v_mul_f32 v{vT+1}, v{vT+1}, v{S+8*t+2*k+1}")
            a(f"v_cvt_pk_bf16_f32 v{Wt+k}, v{vT}, v{vT+1}")
    for sw in ("v_permlane16_swap_b32", "v_permlane32_swap_b32"):
        a(f"v_mov_b32 v{vT}, v{LL}")
        a(f"{sw} v{LL}, v{vT}")
        a(f"v_add_f32 v{LL}, v{LL}, v{vT}")
    a(f"v_sub_f32 v{MM}, v{MM}, v{CC}")
    ACC, ACZ, TP = RB, RB + 32, RB + 36
    for t in range(2):
        R = (RC, RA)[t]
        Wt = (KZ, QR)[t]
        cz = "0" if t == 0 else f"v[{ACZ}:{ACZ+3}]"
        a(f"v_mfma_f32_16x16x32_bf16 v[{ACZ}:{ACZ+3}], v[{Wt}:{Wt+3}], v[{VZ+4*t}:{VZ+4*t+3}], {cz}")
        stamp()
        for half in range(2):
            for k in range(4):
                r0, r1 = R + 4*(half*8 + 2*k), R + 4*(half*8 + 2*k + 1)
                vm.wait(f"v{t}_{half*8+2*k+1}")
                for x in range(4):
                    a(f"v_cvt_f32_i32 v{r0+x}, v{r0+x}")
                    a(f"v_cvt_f32_i32 v{r1+x}, v{r1+x}")
                for c in range(4):
                    a(f"v_cvt_pk_bf16_f32 v{TP+4*c+k}, v{r0+c}, v{r1+c}")
            for c in range(4):
                d = ACC + 16*half + 4*c
                cc = "0" if t == 0 else f"v[{d}:{d+3}]"
                a(f"v_mfma_f32_16x16x32_bf16 v[{d}:{d+3}], v[{Wt}:{Wt+3}], v[{TP+4*c}:{TP+4*c+3}], {cc}")
    stamp()
    O = RC
    a(f"v_lshrrev_b32 v{vT}, 4, v{vL}")
    a(f"v_and_b32 v{vT+1}, 15, v{vL}")
    a(f"v_lshlrev_b32 v{vT+1}, 4, v{vT+1}")
    a(f"v_lshl_add_u32 v{vT+1}, v{vT}, 9, v{vT+1}")
    a("s_lshl_b32 s26, s24, 11")
    a(f"v_add_u32 v{vT+1}, s26, v{vT+1}")
    a(f"v_bfe_u32 v{vT+2}, v{vL}, 2, 2")
    a(f"v_lshlrev_b32 v{vT+2}, 6, v{vT+2}")
    a("s_lshl_b32 s26, s24, 3")
    a("s_add_u32 s26, s26, 16384")
    a(f"v_add_u32 v{vT+2}, s26, v{vT+2}")
    for half in range(2):
        for c in range(4):
            a(f"v_sub_f32 v{O+4*half+c}, v{ACC+16*half+4*c}, v{ACZ}")
    a(f"ds_write_b128 v{vT+1}, v[{O}:{O+3}]")
    a(f"ds_write_b128 v{vT+1}, v[{O+4}:{O+7}] offset:256")
    a(f"v_mov_b32 v{O+8}, v{MM}")
    a(f"v_mov_b32 v{O+9}, v{LL}")
    a("s_mov_b32 exec_lo, 0x1111")
    a("s_mov_b32 exec_hi, 0")
    a(f"ds_write_b64 v{vT+2}, v[{O+8}:{O+9}]")
    a("s_mov_b64 exec, -1")
    a("s_waitcnt lgkmcnt(0)")
    a("s_barrier")
    stamp()
    a("s_cmp_ge_u32 s24, 4")
    a("s_cbranch_scc1 L_skip")
    a("s_mov_b32 exec_hi, 0")
    ST, PP = RA, RA + 16
    a("s_lshl_b32 s26, s24, 6")
    a("s_add_u32 s26, s26, 16384")
    a(f"v_mov_b32 v{vT}, s26")
    a("s_lshl_b32 s26, s24, 9")
    a(f"v_lshlrev_b32 v{vT+1}, 4, v{vL}")
    a(f"v_add_u32 v{vT+1}, s26, v{vT+1}")
    for k in range(4): a(f"ds_read_b128 v[{ST+4*k}:{ST+4*k+3}], v{vT} offset:{16*k}")
    for w in range(8): a(f"ds_read_b128 v[{PP+4*w}:{PP+4*w+3}], v{vT+1} offset:{2048*w}")
    a("s_waitcnt lgkmcnt(8)")
    a(f"v_max3_f32 v{MM}, v{ST}, v{ST+2}, v{ST+4}")
    a(f"v_max3_f32 v{MM}, v{MM}, v{ST+6}, v{ST+8}")
    a(f"v_max3_f32 v{MM}, v{MM}, v{ST+10}, v{ST+12}")
    a(f"v_max_f32 v{MM}, v{MM}, v{ST+14}")
    for w in range(8): a(f"v_sub_f32 v{ST+2*w}, v{ST+2*w}, v{MM}")
    for w in range(8): a(f"v_exp_f32 v{ST+2*w}, v{ST+2*w}")
    a(f"v_mul_f32 v{LL}, v{ST}, v{ST+1}")
    for w in range(1, 8): a(f"v_fmac_f32 v{LL}, v{ST+2*w}, v{ST+2*w+1}")
    for w in range(8):
        a(f"s_waitcnt lgkmcnt({7-w})")
        for c in range(4):
            if w == 0: a(f"v_mul_f32 v{O+c}, v{ST}, v{PP+c}")
            else: a(f"v_fmac_f32 v{O+c}, v{ST+2*w}, v{PP+4*w+c}")
    a("s_lshl_b32 s26, s28, 2")
    a("s_add_u32 s26, s26, s24")
    a("s_and_b32 s27, s2, 31")
    a("s_lshl_b32 s29, s26, 5")
    a("s_add_u32 s29, s29, s27")
    a("s_lshl_b32 s27, s29, 9")
    a(f"v_lshlrev_b32 v{vT}, 4, v{vL}")
    a(f"v_add_u32 v{vT}, s27, v{vT}")
    stf = "sc1" if tail == "atomic" else ""
    a(f"global_store_dwordx4 v{vT}, v[{O}:{O+3}], s[22:23] {stf}")
    a("s_lshl_b32 s27, s29, 3")
    a(f"s_add_u32 s27, s27, {STATS_OFF}")
    a(f"v_mov_b32 v{vT+1}, s27")
    a(f"v_mov_b32 v{O+8}, v{MM}")
    a(f"v_mov_b32 v{O+9}, v{LL}")
    a("s_mov_b32 exec_lo, 1")
    a(f"global_store_dwordx2 v{vT+1}, v[{O+8}:{O+9}], s[22:23] {stf}")
    if tail == "atomic":
        a("s_waitcnt vmcnt(0)")
        a("s_lshl_b32 s27, s26, 2")
        a(f"v_mov_b32 v{vT}, s27")
        a(f"v_mov_b32 v{vT+1}, 1")
        a(f"global_atomic_add v{vT+2}, v{vT}, v{vT+1}, s[20:21] sc0 sc1")
        a("s_waitcnt vmcnt(0)")
        a(f"v_readfirstlane_b32 s27, v{vT+2}")
        a("s_cmp_lg_u32 s27, 31")
        a("s_cbranch_scc1 L_skip")
        a("s_mov_b64 exec, -1")
        final_merge(a, "s26", "s[22:23]", "s[18:19]", vL, 16, "sc1")
    a("L_skip:")
    stamp_out()
    a("L_end:")
    a("s_endpgm")
    body = a.finalize()
    txt = HEAD
    if tail == "two":
        txt += f"; @launch kernel={KN} grid=(256,1,1) block=(512,1,1) lds=16640\n"
        txt += f"; @launch kernel={K2} grid=(32,1,1) block=(64,1,1) lds=0\n"
    else:
        txt += f"; @launch grid=(256,1,1) block=(512,1,1) lds=16640\n"
    txt += f'.amdgcn_target "amdgcn-amd-amdhsa--gfx950"\n.text\n.globl {KN}\n.p2align 8\n.type {KN},@function\n{KN}:\n' + body
    if tail == "two":
        b = Asm()
        b("s_cmp_ge_u32 s2, 32")
        b("s_cbranch_scc1 L2_end")
        b("s_load_dwordx2 s[18:19], s[0:1], 56")
        b("s_load_dwordx2 s[22:23], s[0:1], 72")
        b("v_and_b32 v1, 63, v0")
        b("s_waitcnt lgkmcnt(0)")
        final_merge(b, "s2", "s[22:23]", "s[18:19]", 1, 4, "")
        b("L2_end:")
        b("s_endpgm")
        txt += f".globl {K2}\n.p2align 8\n.type {K2},@function\n{K2}:\n" + b.finalize()
    txt += '.section .rodata,"a"\n.p2align 6\n' + kd(KN, NV)
    if tail == "two": txt += ".p2align 6\n" + kd(K2, 96)
    open(name + ".s", "w").write(txt)
    build(name + ".s")
    print(name, "pads:", a.pads)
if __name__ == "__main__":
    gen("v1_two_nt", "nt", "two")
    gen("v1_two_d", "", "two")
    gen("v1_at_nt", "nt", "atomic")
    gen("v1_at_d", "", "atomic")
    gen("v1_two_nt_st", "nt", "two", stamps=True)
    gen("v1_at_nt_st", "nt", "atomic", stamps=True)
```

```python
import sys, struct, math
from asmlib import Asm
from build import build, KN
from gen_v1 import kd, HEAD, SCALE_LOG2E
A2A_DATA = 0x200000
A2A_STAT = 0x400000

def gen(name, NS=1, d=16, ldf="nt", xmap="xcd", stamps=False, oob=False, maxspin=1<<18, force=None, out=True, chk=4,
        nohelp=False, poll="full", I=None, inbox=False, mkf="sc1", cut=None, outf="", strip=0, early=2, align=None, accpro=True, fspin=False, tst=False, first=True, pf=0, pfe=0, pfslots=2, tlb=0, clk=False):
    a = Asm()
    NT = 16 // NS
    I = I or 32 * NS
    blocked = (I == NS)
    P = 32 * NS
    m = 4 // NS
    lm = m.bit_length() - 1
    U = 2 if d > 8 else 1
    assert 2 <= d <= 16 and NT % U == 0 and (NT // 2) % U == 0
    assert not first or d <= 8 * U - 2
    nst = [0]
    def stamp():
        if stamps:
            i = nst[0]; nst[0] += 1
            a(f"s_memrealtime s[{64+2*i}:{65+2*i}]")
    def stamp_out(n):
        if stamps:
            a("s_waitcnt vmcnt(0) lgkmcnt(0)")
            a("s_mov_b64 exec, 1")
            a(f"s_mul_i32 s60, s2, {NS+1}")
            a("s_add_u32 s60, s60, s50")
            a("s_lshl_b32 s60, s60, 6")
            a("s_add_u32 s60, s60, 0x100000")
            a("v_mov_b32 v10, s60")
            a("s_getreg_b32 s61, hwreg(HW_REG_XCC_ID, 0, 16)")
            a("v_mov_b32 v11, s61")
            a("global_store_dword v10, v11, s[22:23] offset:60")
            a("s_getreg_b32 s61, hwreg(HW_REG_HW_ID)")
            a("v_mov_b32 v11, s61")
            a("global_store_dword v10, v11, s[22:23] offset:56")
            a("s_nop 1")
            for i in range(n):
                a(f"v_mov_b32 v11, s{64+2*i}")
                a(f"global_store_dword v10, v11, s[22:23] offset:{4*i}")
                a("s_nop 1")
    vL, vAd, vV0, vSa, vT = 1, 2, 3, 4, 5
    MM, LL, CC, CC1, vSs, FB, vChk, CK = 12, 13, 14, 15, 16, 17, 18, 19
    QB, QB1 = 20, 24
    VS, VZ = 28, 32
    S, W = 36, 44
    T = 48
    ACC, ACZ = 80, 112
    AD0, AD1, ASt, APd, APs, AOut = 116, 117, 118, 119, 120, 121
    RB = 124
    NV = RB + 64 * U
    TA = [T, T+4]; TD = [T+8, T+12]
    SRD, SVS, SVZ = "s[24:27]", "s[32:35]", "s[36:39]"
    LDS_SC = 0
    LDS_S = LDS_SC + NS * 2048
    LDS = LDS_S + NS * NT * 2048 + 2048
    a("s_cmp_ge_u32 s2, 256")
    a("s_cbranch_scc1 L_end")
    stamp()
    a("s_load_dwordx16 s[4:19], s[0:1], 0")
    a("s_load_dwordx4 s[20:23], s[0:1], 64")
    if xmap == "xcd":
        a("s_and_b32 s40, s2, 7"); a("s_lshr_b32 s41, s2, 3")
    else:
        a("s_lshr_b32 s40, s2, 5"); a("s_and_b32 s41, s2, 31")
    a(f"v_and_b32 v{vL}, 63, v0")
    if pfe:
        a(f"s_cmp_ge_u32 s41, {pfslots}")
        a("s_cbranch_scc1 L_nopf")
        a("s_getpc_b64 s[62:63]")
        a("L_pce:")
        a(f"s_sub_u32 s62, s62, L_pce-{KN}")
        a("s_subb_u32 s63, s63, 0")
        a(f"v_lshlrev_b32 v30, 6, v{vL}")
        for k in range(pfe):
            a(f"v_min_u32 v29, L_hend-{KN}, v30")
            a(f"global_load_dword v31, v29, s[62:63]")
            if k + 1 < pfe: a("v_add_u32 v30, 4096, v30")
        a("L_nopf:")
    a(f"v_lshrrev_b32 v{vT}, 6, v0")
    a(f"v_readfirstlane_b32 s50, v{vT}")
    a(f"v_lshrrev_b32 v{vT}, 4, v{vL}")
    a(f"v_and_b32 v{vT+1}, 3, v{vL}")
    a(f"v_bfe_u32 v{vT+2}, v{vL}, 2, 2")
    a(f"s_cmp_eq_u32 s50, {NS}")
    a("s_cbranch_scc1 L_helper")
    a(f"v_lshl_add_u32 v{vT+4}, v{vT}, 2, v{vT+1}")
    a(f"v_lshlrev_b32 v{vAd}, 4, v{vT+4}")
    a(f"v_lshl_add_u32 v{vAd}, v{vT+2}, 12, v{vAd}")
    if blocked:
        a(f"s_lshl_b32 s51, s41, 4"); a("s_add_u32 s51, s51, s50")
    elif NS == 1:
        a("s_mov_b32 s51, s41")
    else:
        a(f"s_mul_i32 s51, s41, {NS}"); a("s_add_u32 s51, s51, s50")
    a("s_lshl_b32 s43, s51, 14")
    a(f"v_add_u32 v{vAd}, s43, v{vAd}")
    a("s_lshl_b32 s46, s40, 23")
    KSZ, SSZ = 1 << 23, 1 << 15
    if oob: a("s_mov_b32 s26, 0")
    elif blocked: a("s_add_u32 s26, s41, 1"); a("s_lshl_b32 s26, s26, 18")
    else: a(f"s_mov_b32 s26, {KSZ}")
    a("s_mov_b32 s27, 0x20000")
    a("s_waitcnt lgkmcnt(0)")
    stamp()
    a("s_add_u32 s24, s6, s46"); a("s_addc_u32 s25, s7, 0")
    def rest_of_setup():
        a(f"v_and_b32 v{vT+3}, 15, v{vL}")
        a(f"v_lshlrev_b32 v{vV0}, 4, v{vT+3}")
        a(f"v_lshl_add_u32 v{vV0}, v{vT}, 12, v{vV0}")
        a(f"v_add_u32 v{vV0}, s43, v{vV0}")
        a("s_add_u32 s28, s8, s46"); a("s_addc_u32 s29, s9, 0")
        a(f"v_lshlrev_b32 v{vZo}, 3, v{vT+4}")
        a(f"v_lshl_add_u32 v{vQo}, v{vT+2}, 8, v{vZo}")
        a("s_lshl_b32 s43, s40, 10")
        a(f"v_add_u32 v{vQo}, s43, v{vQo}")
        a("s_lshl_b32 s43, s40, 9")
        a(f"v_add_u32 v{vZo}, s43, v{vZo}")
        a(f"v_lshrrev_b32 v{vSo}, 2, v{vL}")
        a(f"v_mul_u32_u24 v{vSo}, {I*64}, v{vSo}")
        a(f"v_lshl_add_u32 v{vSo}, v{vT+1}, 4, v{vSo}")
        a("s_lshl_b32 s43, s51, 6")
        a(f"v_add_u32 v{vSo}, s43, v{vSo}")
        a("s_lshl_b32 s47, s40, 15")
        for srd, p in ((32, 14), (36, 16)):
            a(f"s_add_u32 s{srd}, s{p}, s47")
            a(f"s_addc_u32 s{srd+1}, s{p+1}, 0")
            a(f"s_mov_b32 s{srd+2}, {SSZ}")
            a(f"s_mov_b32 s{srd+3}, 0x20000")
    def lds_setup():
        a(f"s_lshl_b32 s43, s50, 11"); a(f"s_add_u32 s43, s43, {LDS_SC}")
        a(f"v_lshlrev_b32 v{vSs}, 4, v{vL}")
        a(f"v_add_u32 v{FB}, s43, v{vSs}")
        a(f"v_lshlrev_b32 v{vSa}, 4, v{vT}")
        a(f"v_add_u32 v{vSa}, s43, v{vSa}")
        a(f"s_mul_i32 s43, s50, {NT*2048}"); a(f"s_add_u32 s43, s43, {LDS_S}")
        a(f"v_add_u32 v{vSs}, s43, v{vSs}")
        a("s_mov_b32 s44, 0xaaaaaaaa")
        a("s_mov_b32 s45, 0xaaaaaaaa")
    vSo = MM
    vQo, vZo = vT+5, vT+6
    step = I * 16384
    def pair(pi, e):
        for i in range(2):
            r = RB + 64*pi + 8*e + 4*i
            a(f"buffer_load_dwordx4 v[{r}:{r+3}], v{vAd}, {SRD}, 0 offen offset:{e*512+i*256} {ldf}")
    lbl = [0]
    def issue(j, kphase):
        if j % 8 == 0:
            if kphase:
                lbl[0] += 1
                a("s_add_u32 s57, s57, 1")
                a(f"s_cmp_eq_u32 s57, {NT}")
                a(f"s_cbranch_scc1 L_tov{lbl[0]}")
                a(f"v_add_u32 v{vAd}, {step}, v{vAd}")
                a(f"s_branch L_adv{lbl[0]}")
                a(f"L_tov{lbl[0]}:")
                a("s_mov_b32 s24, s28"); a("s_mov_b32 s25, s29")
                a(f"v_mov_b32 v{vAd}, v{vV0}")
                a(f"L_adv{lbl[0]}:")
            else:
                a(f"v_add_u32 v{vAd}, {step}, v{vAd}")
        pair((j // 8) % U, j % 8)
    QR, KSR, KZR = ACC, ACC + 4, ACC + 12
    SVR, SZR = ACC + 20, ACC + 24
    a("s_mov_b32 s57, 0")
    for j in range(early): pair(0, j)
    rest_of_setup()
    for i in range(2):
        a(f"global_load_dwordx2 v[{QR+2*i}:{QR+2*i+1}], v{vQo}, s[4:5] offset:{128*i}")
    for g in range(2):
        for i in range(2):
            a(f"global_load_dwordx2 v[{KSR+4*g+2*i}:{KSR+4*g+2*i+1}], v{vZo}, s[10:11] offset:{256*g+128*i}")
            a(f"global_load_dwordx2 v[{KZR+4*g+2*i}:{KZR+4*g+2*i+1}], v{vZo}, s[12:13] offset:{256*g+128*i}")
    a(f"buffer_load_dwordx4 v[{SVR}:{SVR+3}], v{vSo}, {SVS}, 0 offen")
    a(f"buffer_load_dwordx4 v[{SZR}:{SZR+3}], v{vSo}, {SVZ}, 0 offen")
    for j in range(early, d): issue(j, True)
    stamp()
    lds_setup()
    a(f"s_waitcnt vmcnt({2*(d-early)})")
    a(f"ds_write_b128 v{FB}, v[{SVR}:{SVR+3}]")
    a(f"ds_write_b128 v{FB}, v[{SZR}:{SZR+3}] offset:1024")
    a(f"s_mul_i32 s56, s41, {NS}"); a("s_add_u32 s56, s56, s50")
    a(f"v_lshrrev_b32 v{vT}, 4, v{vL}")
    a(f"v_and_b32 v{vT+1}, 15, v{vL}")
    a(f"v_lshrrev_b32 v{vT+3}, {lm}, v{vT+1}")
    a(f"v_and_b32 v{vT+1}, {m-1}, v{vT+1}")
    a(f"v_bfe_u32 v{vT+2}, v{vL}, 2, 2")
    a(f"v_mul_u32_u24 v{AD0}, {8*NS}, v{vT}")
    a(f"v_add_u32 v{AD0}, v{AD0}, v{vT+3}")
    a(f"v_lshlrev_b32 v{AD0}, 11, v{AD0}")
    a(f"v_lshl_add_u32 v{AD0}, v{vT+1}, 4, v{AD0}")
    a(f"s_mul_i32 s43, s40, {P*2048}"); a(f"s_mul_i32 s48, s56, {64//NS}"); a("s_add_u32 s43, s43, s48"); a(f"s_add_u32 s43, s43, {A2A_DATA}")
    a(f"v_add_u32 v{AD0}, s43, v{AD0}")
    a(f"v_add_u32 v{AD1}, {8192*NS}, v{AD0}")
    a(f"v_mul_u32_u24 v{ASt}, {P*8}, v{vT+2}")
    a(f"s_mul_i32 s43, s40, {4*P*8}"); a("s_lshl_b32 s48, s56, 3"); a("s_add_u32 s43, s43, s48"); a(f"s_add_u32 s43, s43, {A2A_STAT}")
    a(f"v_add_u32 v{ASt}, s43, v{ASt}")
    a(f"s_mul_i32 s43, s40, {P}"); a("s_add_u32 s43, s43, s56"); a("s_lshl_b32 s43, s43, 11"); a(f"s_add_u32 s43, s43, {A2A_DATA}")
    a(f"v_lshlrev_b32 v{APd}, 4, v{vL}")
    a(f"v_add_u32 v{APd}, s43, v{APd}")
    a(f"s_lshr_b32 s48, s56, {(8*NS).bit_length()-1}"); a("s_lshl_b32 s49, s40, 2"); a("s_add_u32 s49, s49, s48")
    a(f"s_mul_i32 s43, s49, {P*8}"); a(f"s_add_u32 s43, s43, {A2A_STAT}")
    a(f"v_lshrrev_b32 v{APs}, {lm}, v{vL}")
    a(f"v_lshlrev_b32 v{APs}, 3, v{APs}")
    a(f"v_add_u32 v{APs}, s43, v{APs}")
    a(f"s_and_b32 s48, s56, {8*NS-1}"); a(f"s_mul_i32 s48, s48, {32//NS}"); a("s_lshl_b32 s43, s49, 8"); a("s_add_u32 s43, s43, s48")
    a(f"v_lshlrev_b32 v{AOut}, 3, v{vL}")
    a(f"v_add_u32 v{AOut}, s43, v{AOut}")
    a("s_getreg_b32 s53, hwreg(HW_REG_XCC_ID, 0, 4)")
    a("s_mul_i32 s54, s53, s53")
    a("s_lshl_b32 s54, s54, 18")
    a("s_lshl_b32 s53, s53, 8")
    a("s_add_u32 s53, s53, s54")
    a("s_add_u32 s53, s53, 1")
    a("s_lshl_b32 s54, s53, 5")
    a(f"s_mov_b32 s43, {SCALE_LOG2E}")
    def post(D, dst):
        a(f"v_cndmask_b32 v{vT}, v{D}, v{D+1}, s[44:45]")
        a(f"v_cndmask_b32 v{vT+1}, v{D+2}, v{D+3}, s[44:45]")
        a(f"v_add_f32_dpp v{vT}, v{vT+1}, v{vT} quad_perm:[2,3,0,1] row_mask:0xf bank_mask:0xf")
        a(f"v_add_f32_dpp v{dst}, v{vT}, v{vT} quad_perm:[1,0,3,2] row_mask:0xf bank_mask:0xf")
    for g in range(2):
        qb = (QB, QB1)[g]
        for k in range(4):
            lo, hi = T, T+1
            a(f"v_lshlrev_b32 v{lo}, 16, v{QR+k}")
            a(f"v_and_b32 v{hi}, 0xffff0000, v{QR+k}")
            a(f"v_lshlrev_b32 v{T+2}, 16, v{KSR+4*g+k}")
            a(f"v_and_b32 v{T+3}, 0xffff0000, v{KSR+4*g+k}")
            a(f"v_mul_f32 v{lo}, v{lo}, v{T+2}")
            a(f"v_mul_f32 v{hi}, v{hi}, v{T+3}")
            a(f"v_mul_f32 v{lo}, s43, v{lo}")
            a(f"v_mul_f32 v{hi}, s43, v{hi}")
            a(f"v_cvt_pk_bf16_f32 v{qb+k}, v{lo}, v{hi}")
        a(f"v_mfma_f32_16x16x32_bf16 v[{T+4+4*g}:{T+7+4*g}], v[{KZR+4*g}:{KZR+4*g+3}], v[{qb}:{qb+3}], 0")
    for g in range(2):
        post(T+4+4*g, (CC, CC1)[g])
    a(f"v_mov_b32 v{MM}, 0xff800000")
    a(f"v_mov_b32 v{LL}, 0")
    a(f"v_mov_b32 v{vChk}, 0")
    if accpro:
        for r in range(ACC, ACC+36): a(f"v_mov_b32 v{r}, 0")
    half_sw = (NT // 2) if not blocked else None
    if blocked:
        a("s_cmp_lt_u32 s41, 16")
        a("s_cbranch_scc1 L_g0")
        for k in range(4): a(f"v_mov_b32 v{QB+k}, v{QB1+k}")
        a(f"v_mov_b32 v{CC}, v{CC1}")
        a("L_g0:")
    a(f"v_mov_b32 v{CK}, v{CC}")
    a("s_mov_b32 s42, 0")
    full = a
    def filt(text):
        op = text.split()[0]
        if strip >= 1 and op == "v_cvt_f32_i32": return
        if strip >= 2 and op in ("v_cvt_pk_bf16_f32", "v_mfma_f32_16x16x32_bf16", "v_cndmask_b32", "v_add_f32_dpp"): return
        if strip >= 3 and op.startswith("v_") and op not in ("v_add_u32", "v_mov_b32", "v_subrev_u32"): return
        full(text)
    a = filt
    if tst:
        full("s_mov_b32 s58, 0"); full("v_mov_b32 v122, 0")
    def tstamp():
        if tst:
            full("s_memrealtime s[90:91]"); full("s_waitcnt lgkmcnt(0)"); full("s_mov_b32 m0, s58"); full("s_nop 3"); full("v_writelane_b32 v122, s90, m0"); full("s_add_u32 s58, s58, 1")
    tstamp()
    if clk: full("s_memtime s[84:85]"); full("s_memrealtime s[86:87]")
    if align: a(f".p2align {align}")
    a("L_kloop:")
    if half_sw is not None:
        a(f"s_cmp_eq_u32 s42, {half_sw}")
        a("s_cbranch_scc0 L_nosw")
        for k in range(4): a(f"v_mov_b32 v{QB+k}, v{QB1+k}")
        a(f"v_mov_b32 v{CK}, v{CC1}")
        a("L_nosw:")
    for pi in range(U):
        for e in range(8):
            r = RB + 64*pi + 8*e
            ta, td, pd = TA[e&1], TD[e&1], TD[(e-1)&1]
            a(f"s_waitcnt vmcnt({2*(d-1)})")
            if first: issue(8*pi + e + d, True)
            for x in range(8): a(f"v_cvt_f32_i32 v{r+x}, v{r+x}")
            if e > 0:
                a(f"v_cndmask_b32 v{vT}, v{pd}, v{pd+1}, s[44:45]")
                a(f"v_cndmask_b32 v{vT+1}, v{pd+2}, v{pd+3}, s[44:45]")
            a(f"v_cvt_pk_bf16_f32 v{ta}, v{r}, v{r+1}")
            a(f"v_cvt_pk_bf16_f32 v{ta+1}, v{r+2}, v{r+3}")
            if e > 0: a(f"v_add_f32_dpp v{vT}, v{vT+1}, v{vT} quad_perm:[2,3,0,1] row_mask:0xf bank_mask:0xf")
            a(f"v_cvt_pk_bf16_f32 v{ta+2}, v{r+4}, v{r+5}")
            a(f"v_cvt_pk_bf16_f32 v{ta+3}, v{r+6}, v{r+7}")
            if e > 0: a(f"v_add_f32_dpp v{S+e-1}, v{vT}, v{vT} quad_perm:[1,0,3,2] row_mask:0xf bank_mask:0xf")
            if not first: issue(8*pi + e + d, True)
            a(f"v_mfma_f32_16x16x32_bf16 v[{td}:{td+3}], v[{ta}:{ta+3}], v[{QB}:{QB+3}], 0")
        t0 = vT+2
        pd = TD[1]
        a(f"v_max3_f32 v{t0}, v{S}, v{S+1}, v{S+2}")
        a(f"ds_write_b128 v{vSs}, v[{S}:{S+3}]")
        a(f"v_max3_f32 v{t0}, v{t0}, v{S+3}, v{S+4}")
        a(f"v_max3_f32 v{t0}, v{t0}, v{S+5}, v{S+6}")
        a("s_nop 3")
        a(f"v_cndmask_b32 v{vT}, v{pd}, v{pd+1}, s[44:45]")
        a(f"v_cndmask_b32 v{vT+1}, v{pd+2}, v{pd+3}, s[44:45]")
        a(f"v_sub_f32 v{t0}, v{t0}, v{CK}")
        a(f"v_max_f32 v{MM}, v{MM}, v{t0}")
        a(f"v_add_f32_dpp v{vT}, v{vT+1}, v{vT} quad_perm:[2,3,0,1] row_mask:0xf bank_mask:0xf")
        a("s_nop 1")
        a(f"v_add_f32_dpp v{S+7}, v{vT}, v{vT} quad_perm:[1,0,3,2] row_mask:0xf bank_mask:0xf")
        a(f"v_sub_f32 v{t0}, v{S+7}, v{CK}")
        a(f"ds_write_b128 v{vSs}, v[{S+4}:{S+7}] offset:1024")
        a(f"v_max_f32 v{MM}, v{MM}, v{t0}")
        a(f"v_add_u32 v{vSs}, 2048, v{vSs}")
        tstamp()
    a(f"s_add_u32 s42, s42, {U}")
    a(f"s_cmp_lt_u32 s42, {NT}")
    a("s_cbranch_scc1 L_kloop")
    stamp()
    a(f"v_subrev_u32 v{vSs}, {NT*2048}, v{vSs}")
    a(f"v_mov_b32 v{CK}, v{CC}")
    a(f"v_mov_b32 v{vT}, v{MM}")
    a(f"ds_read_b128 v[{S}:{S+3}], v{vSs}")
    a(f"ds_read_b128 v[{S+4}:{S+7}], v{vSs} offset:1024")
    a(f"v_permlane16_swap_b32 v{MM}, v{vT}")
    a(f"v_max_f32 v{MM}, v{MM}, v{vT}")
    a(f"ds_read_b128 v[{VS}:{VS+3}], v{vSa}")
    a(f"v_mov_b32 v{vT}, v{MM}")
    a(f"ds_read_b128 v[{VZ}:{VZ+3}], v{vSa} offset:1024")
    a(f"v_add_u32 v{vSs}, 2048, v{vSs}")
    a(f"v_permlane32_swap_b32 v{MM}, v{vT}")
    a(f"v_max_f32 v{MM}, v{MM}, v{vT}")
    if not accpro:
        for r in range(ACC, ACC+36): a(f"v_mov_b32 v{r}, 0")
    a("s_mov_b32 s42, 0")
    if align: a(f".p2align {align}")
    a("L_vloop:")
    for pi in range(U):
        if pi == 0:
            a(f"s_cmp_eq_u32 s42, {max(NT-max(chk,U), 0) // U * U}")
            a("s_cbranch_scc0 L_nochk")
            a(f"s_lshl_b32 s43, s40, 5")
            a(f"v_mov_b32 v{vT}, s43")
            if not fspin: a(f"global_load_dword v{vChk}, v{vT}, s[20:21] sc1")
            a("L_nochk:")
        mc = FB
        a(f"v_add_f32 v{mc}, v{MM}, v{CK}")
        a("s_waitcnt lgkmcnt(0)")
        for k in range(8): a(f"v_sub_f32 v{S+k}, v{S+k}, v{mc}")
        for k in range(4):
            a(f"v_exp_f32 v{S+2*k}, v{S+2*k}")
            a(f"v_lshlrev_b32 v{T+2*k}, 16, v{VS+k}")
            a(f"v_exp_f32 v{S+2*k+1}, v{S+2*k+1}")
            a(f"v_and_b32 v{T+2*k+1}, 0xffff0000, v{VS+k}")
        for k in range(4):
            a(f"v_mul_f32 v{T+2*k}, v{T+2*k}, v{S+2*k}")
            a(f"v_mul_f32 v{T+2*k+1}, v{T+2*k+1}, v{S+2*k+1}")
            a(f"v_add_f32 v{LL}, v{LL}, v{S+2*k}")
            a(f"v_cvt_pk_bf16_f32 v{W+k}, v{T+2*k}, v{T+2*k+1}")
            a(f"v_add_f32 v{LL}, v{LL}, v{S+2*k+1}")
        a(f"v_add_u32 v{vSa}, 64, v{vSa}")
        a(f"ds_read_b128 v[{S}:{S+3}], v{vSs}")
        a(f"v_mfma_f32_16x16x32_bf16 v[{ACZ}:{ACZ+3}], v[{W}:{W+3}], v[{VZ}:{VZ+3}], v[{ACZ}:{ACZ+3}]")
        a(f"ds_read_b128 v[{S+4}:{S+7}], v{vSs} offset:1024")
        a(f"ds_read_b128 v[{VS}:{VS+3}], v{vSa}")
        for k in range(4):
            r0 = RB + 64*pi + 8*(2*k)
            r1 = r0 + 8
            a(f"s_waitcnt vmcnt({2*(d-2)})")
            if first: issue(8*pi + 2*k + d, False); issue(8*pi + 2*k + 1 + d, False)
            for x in range(8):
                a(f"v_cvt_f32_i32 v{r0+x}, v{r0+x}")
                a(f"v_cvt_f32_i32 v{r1+x}, v{r1+x}")
            if k == 0:
                a(f"ds_read_b128 v[{VZ}:{VZ+3}], v{vSa} offset:1024")
                a(f"v_add_u32 v{vSs}, 2048, v{vSs}")
            for half in range(2):
                for c in range(4):
                    a(f"v_cvt_pk_bf16_f32 v{T+16*half+4*c+k}, v{r0+4*half+c}, v{r1+4*half+c}")
            if not first: issue(8*pi + 2*k + d, False); issue(8*pi + 2*k + 1 + d, False)
        for half in range(2):
            for c in range(4):
                dd = ACC + 16*half + 4*c
                a(f"v_mfma_f32_16x16x32_bf16 v[{dd}:{dd+3}], v[{W}:{W+3}], v[{T+16*half+4*c}:{T+16*half+4*c+3}], v[{dd}:{dd+3}]")
        tstamp()
        if half_sw is not None and pi == U - 1:
            a(f"s_cmp_eq_u32 s42, {half_sw - U}")
            a("s_cbranch_scc0 L_nosw2")
            a(f"v_mov_b32 v{CK}, v{CC1}")
            a("L_nosw2:")
    a(f"s_add_u32 s42, s42, {U}")
    a(f"s_cmp_lt_u32 s42, {NT}")
    a("s_cbranch_scc1 L_vloop")
    stamp()
    a = full
    if clk:
        a("s_memtime s[88:89]"); a("s_memrealtime s[90:91]"); a("s_waitcnt lgkmcnt(0)")
        a("s_sub_u32 s88, s88, s84"); a("s_sub_u32 s90, s90, s86")
        a("s_lshl_b32 s43, s2, 4"); a("s_add_u32 s43, s43, 0x300000")
        a(f"v_mov_b32 v{vT}, s43"); a(f"v_mov_b32 v{vT+1}, s88"); a(f"v_mov_b32 v{vT+2}, s90")
        a("s_getreg_b32 s61, hwreg(HW_REG_XCC_ID, 0, 4)"); a(f"v_mov_b32 v{vT+3}, s61")
        a("s_mov_b64 exec, 1")
        a(f"global_store_dword v{vT}, v{vT+1}, s[22:23]"); a(f"global_store_dword v{vT}, v{vT+2}, s[22:23] offset:4"); a(f"global_store_dword v{vT}, v{vT+3}, s[22:23] offset:8")
        a("s_mov_b64 exec, -1")
    if tst:
        a("s_lshl_b32 s43, s2, 8"); a("s_add_u32 s43, s43, 0x300000")
        a(f"v_lshlrev_b32 v{vT}, 2, v{vL}")
        a(f"v_add_u32 v{vT}, s43, v{vT}")
        a(f"global_store_dword v{vT}, v122, s[22:23]")
    if cut == "notail": a("s_branch L_send")
    vD0, vD1, vSt, vPd, vPs = RB, RB+1, RB+2, RB+3, RB+4
    a(f"v_mov_b32 v{vT}, v{LL}")
    a(f"v_readfirstlane_b32 s48, v{vChk}")
    a(f"v_permlane16_swap_b32 v{LL}, v{vT}")
    a(f"v_add_f32 v{LL}, v{LL}, v{vT}")
    a(f"v_mov_b32 v{vT}, v{LL}")
    a("s_mov_b32 s43, 0xfffffffe")
    a("s_and_b32 s55, s48, 0xff")
    a(f"v_permlane32_swap_b32 v{LL}, v{vT}")
    a(f"v_add_f32 v{LL}, v{LL}, v{vT}")
    O = S
    SP = W
    a("s_waitcnt lgkmcnt(0)")
    a(f"v_min_u32 v{SP}, s43, v{MM}")
    a(f"v_min_u32 v{SP+1}, s43, v{LL}")
    for half in range(2):
        for c in range(4):
            a(f"v_sub_f32 v{O+4*half+c}, v{ACC+16*half+4*c}, v{ACZ}")
    for x in range(8): a(f"v_min_u32 v{O+x}, s43, v{O+x}")
    a("s_cmp_ge_u32 s55, 32")
    a("s_cbranch_scc1 L_started")
    a("s_mov_b32 s52, 0")
    a("s_lshl_b32 s43, s40, 5")
    a(f"v_mov_b32 v{vT}, s43")
    a("L_spin0:")
    a(f"global_load_dword v{vChk}, v{vT}, s[20:21] sc1")
    a("s_add_u32 s52, s52, 1")
    a("s_waitcnt vmcnt(0)")
    a(f"v_readfirstlane_b32 s48, v{vChk}")
    a(f"s_cmp_gt_u32 s52, {maxspin}")
    a("s_cbranch_scc1 L_started")
    a("s_and_b32 s55, s48, 0xff")
    a("s_cmp_ge_u32 s55, 32")
    a("s_cbranch_scc0 L_spin0")
    a("L_started:")
    if force == "slow": a("s_branch L_pslow")
    a("s_cmp_eq_u32 s48, s54")
    a("s_cbranch_scc0 L_pslow")
    a(f"global_store_dwordx4 v{AD0}, v[{O}:{O+3}], s[22:23]")
    a(f"global_store_dwordx4 v{AD1}, v[{O+4}:{O+7}], s[22:23]")
    a("s_mov_b64 exec, 0x1111")
    a(f"global_store_dwordx2 v{ASt}, v[{SP}:{SP+1}], s[22:23]")
    a("s_branch L_pdone")
    a("L_pslow:")
    a(f"global_store_dwordx4 v{AD0}, v[{O}:{O+3}], s[22:23] sc1")
    a(f"global_store_dwordx4 v{AD1}, v[{O+4}:{O+7}], s[22:23] sc1")
    a("s_mov_b64 exec, 0x1111")
    a(f"global_store_dwordx2 v{ASt}, v[{SP}:{SP+1}], s[22:23] sc1")
    a("L_pdone:")
    a("s_mov_b64 exec, -1")
    stamp()
    if cut == "pub": a("s_branch L_send")
    PD, PS = T, T + 8
    a("s_mov_b32 s52, 0")
    a("L_poll:")
    a(f"global_load_dwordx2 v[{PS}:{PS+1}], v{APs}, s[22:23] sc1")
    a(f"global_load_dwordx2 v[{PS+2}:{PS+3}], v{APs}, s[22:23] offset:{P*4} sc1")
    a(f"global_load_dwordx4 v[{PD}:{PD+3}], v{APd}, s[22:23] sc1")
    a(f"global_load_dwordx4 v[{PD+4}:{PD+7}], v{APd}, s[22:23] offset:1024 sc1")
    a("s_add_u32 s52, s52, 1")
    a(f"s_cmp_gt_u32 s52, {maxspin}")
    a("s_cbranch_scc1 L_polled0")
    a("s_waitcnt vmcnt(2)")
    a(f"v_max3_u32 v{vT+1}, v{PS}, v{PS+1}, v{PS+2}")
    a(f"v_max_f32 v{vT+2}, v{PS}, v{PS+2}")
    a(f"v_max_u32 v{vT+1}, v{vT+1}, v{PS+3}")
    a("s_waitcnt vmcnt(0)")
    a(f"v_max3_u32 v{vT}, v{PD}, v{PD+1}, v{PD+2}")
    a(f"v_max3_u32 v{vT+1}, v{vT+1}, v{PD+3}, v{PD+4}")
    a(f"v_max3_u32 v{vT}, v{vT}, v{PD+5}, v{PD+6}")
    a(f"v_max3_u32 v{vT}, v{vT}, v{vT+1}, v{PD+7}")
    a(f"v_cmp_eq_u32 vcc, -1, v{vT}")
    rors = [r for r in (1, 2, 4, 8) if r >= m]
    a(f"v_max_f32_dpp v{vT+2}, v{vT+2}, v{vT+2} row_ror:{rors[0]} row_mask:0xf bank_mask:0xf")
    a("s_nop 3")
    a("s_cbranch_vccnz L_poll")
    a("L_polled0:")
    a("s_waitcnt vmcnt(0)")
    stamp()
    mx, t, f0, f1, ls = vT+2, vT+1, vT+3, vT+4, vT+5
    X = T + 16
    for r in rors[1:]:
        a(f"v_max_f32_dpp v{mx}, v{mx}, v{mx} row_ror:{r} row_mask:0xf bank_mask:0xf")
    a(f"v_mov_b32 v{t}, v{mx}")
    a(f"v_permlane16_swap_b32 v{mx}, v{t}")
    a(f"v_max_f32 v{mx}, v{mx}, v{t}")
    a(f"v_mov_b32 v{t}, v{mx}")
    a(f"v_permlane32_swap_b32 v{mx}, v{t}")
    a(f"v_max_f32 v{mx}, v{mx}, v{t}")
    a(f"v_sub_f32 v{f0}, v{PS}, v{mx}")
    a(f"v_sub_f32 v{f1}, v{PS+2}, v{mx}")
    a(f"v_exp_f32 v{f0}, v{f0}")
    a(f"v_exp_f32 v{f1}, v{f1}")
    R = [PS+1, PD, PD+1, PD+2, PD+3]
    a(f"v_mul_f32 v{PS+1}, v{PS+1}, v{f0}")
    for c in range(4): a(f"v_mul_f32 v{PD+c}, v{PD+c}, v{f0}")
    a(f"v_fmac_f32 v{PS+1}, v{PS+3}, v{f1}")
    for c in range(4): a(f"v_fmac_f32 v{PD+c}, v{PD+4+c}, v{f1}")
    for r in rors:
        for x in R: a(f"v_add_f32_dpp v{x}, v{x}, v{x} row_ror:{r} row_mask:0xf bank_mask:0xf")
    for sw in ("v_permlane16_swap_b32", "v_permlane32_swap_b32"):
        for k, x in enumerate(R): a(f"v_mov_b32 v{X+k}, v{x}")
        for k, x in enumerate(R): a(f"{sw} v{x}, v{X+k}")
        for k, x in enumerate(R): a(f"v_add_f32 v{x}, v{x}, v{X+k}")
    a(f"v_rcp_f32 v{ls}, v{PS+1}")
    a(f"s_mov_b64 exec, {(1 << m) - 1}")
    for c in range(4): a(f"v_mul_f32 v{PD+c}, v{PD+c}, v{ls}")
    a(f"v_cvt_pk_bf16_f32 v{PD}, v{PD}, v{PD+1}")
    a(f"v_cvt_pk_bf16_f32 v{PD+1}, v{PD+2}, v{PD+3}")
    a(f"global_store_dwordx2 v{AOut}, v[{PD}:{PD+1}], s[18:19] {outf}")
    stamp()
    a("L_send:")
    nstream = nst[0]
    stamp_out(nstream)
    a("s_endpgm")
    nst[0] = 1
    a("L_helper:")
    if pf:
        a("s_getpc_b64 s[62:63]")
        a("L_pc:")
        a(f"s_sub_u32 s62, s62, L_pc-{KN}")
        a("s_subb_u32 s63, s63, 0")
        a(f"v_lshlrev_b32 v30, 6, v{vL}")
        for k in range(pf):
            a(f"v_min_u32 v29, L_hend-{KN}, v30")
            a(f"global_load_dword v31, v29, s[62:63]")
            if k + 1 < pf: a("v_add_u32 v30, 4096, v30")
    vPd, vSt, MK = 20, 21, 24
    a(f"s_mul_i32 s43, s40, {P}"); a(f"s_mul_i32 s48, s41, {NS}"); a("s_add_u32 s43, s43, s48"); a("s_lshl_b32 s43, s43, 11"); a(f"s_add_u32 s43, s43, {A2A_DATA}")
    a(f"v_lshlrev_b32 v{vPd}, 4, v{vL}")
    a(f"v_add_u32 v{vPd}, s43, v{vPd}")
    a(f"v_mul_u32_u24 v{vSt}, {P*8}, v{vT}")
    a(f"s_mul_i32 s43, s40, {4*P*8}"); a(f"s_mul_i32 s48, s41, {NS*8}"); a("s_add_u32 s43, s43, s48"); a(f"s_add_u32 s43, s43, {A2A_STAT}")
    a(f"v_add_u32 v{vSt}, s43, v{vSt}")
    for k in range(4): a(f"v_mov_b32 v{MK+k}, -1")
    a("s_getreg_b32 s53, hwreg(HW_REG_XCC_ID, 0, 4)")
    a("s_mul_i32 s54, s53, s53")
    a("s_lshl_b32 s54, s54, 18")
    a("s_lshl_b32 s53, s53, 8")
    a("s_add_u32 s53, s53, s54")
    a("s_add_u32 s53, s53, 1")
    a("s_lshl_b32 s43, s40, 5")
    a(f"v_mov_b32 v28, s43")
    a(f"v_mov_b32 v29, s53")
    a("s_waitcnt lgkmcnt(0)")
    stamp()
    if nohelp: a("s_branch L_hend")
    if tlb:
        a(f"s_cmp_ge_u32 s41, {tlb}")
        a("s_cbranch_scc1 L_notlb")
        a("s_lshl_b32 s46, s40, 23")
        a(f"v_lshlrev_b32 v30, 17, v{vL}")
        a("v_add_u32 v30, s46, v30")
        a("global_load_dword v31, v30, s[6:7] nt")
        a("global_load_dword v31, v30, s[8:9] nt")
        a("L_notlb:")
    for k in range(2*NS):
        a(f"global_store_dwordx4 v{vPd}, v[{MK}:{MK+3}], s[22:23] offset:{1024*k} {mkf}")
    a("s_mov_b32 exec_lo, 0x00010001"); a("s_mov_b32 exec_hi, 0x00010001")
    if NS == 1: a(f"global_store_dwordx2 v{vSt}, v[{MK}:{MK+1}], s[22:23] sc1")
    else:
        for k in range(NS // 2): a(f"global_store_dwordx4 v{vSt}, v[{MK}:{MK+3}], s[22:23] offset:{16*k} sc1")
    a("s_waitcnt vmcnt(0)")
    a("s_mov_b64 exec, 1")
    a("global_atomic_add v28, v29, s[20:21] sc1")
    stamp()
    a("L_hend:")
    stamp_out(nst[0])
    a("L_end:")
    a("s_endpgm")
    body = a.finalize()
    txt = HEAD + f"; @launch grid=(256,1,1) block=({64*(NS+1)},1,1) lds={LDS}\n"
    txt += f'.amdgcn_target "amdgcn-amd-amdhsa--gfx950"\n.text\n.globl {KN}\n.p2align 8\n.type {KN},@function\n{KN}:\n' + body
    txt += '.section .rodata,"a"\n.p2align 6\n' + kd(KN, max(NV, 120))
    open(name + ".s", "w").write(txt)
    build(name + ".s")
    if out: print(name, "pads:", a.pads, "stamps:", nstream, nst[0], "vgprs", NV, "lds", LDS)
if __name__ == "__main__":
    V = eval(open(sys.argv[1]).read())
    names = []
    for nm, v in V:
        gen(nm, **v); names.append(nm)
    print(" ".join(n + ".co" for n in names))
```

```python
import sys, re
import gen_v12
from build import build
OUT = "standalone__kv_cache_quant_int4_int2_kv_with_per_channel_or_per_token_scales__decode.s"
DESC = """;
;
"""
NOTES = {
 "L_kloop:": "; ---- K phase: two tiles per trip (ring slots 0-7, 8-15); after each pair is consumed the pair 16 ahead is issued",
 "L_vloop:": "; ---- V phase: weights of the tile from the parked logits, then 4 steps of two token pairs, then 9 MFMAs",
 "L_spin0:": "; rare: the sign-in counter was not complete when sampled during the stream",
 "L_started:": "; all 32 inboxes of this head are invalidated; publish through L2 (same die) or write-through (any placement)",
 "L_poll:": "; gather (max, sum) and 16 partial outputs from the 32 producers until no invalid word is left",
 "L_polled0:": "; merge the 32 partials, normalise, store 16 bf16 outputs",
 "L_helper:": "; ---- wave 1: invalidate this workgroup's inbox and stat slots, wait for the stores, sign in",
}
def main(**kw):
    gen_v12.gen("final_tmp", out=False, **kw)
    s = open("final_tmp.s").read()
    lines = s.split("\n")
    out = []
    for ln in lines:
        if ln.startswith(".amdgcn_target"): out.append(DESC.rstrip("\n"))
        if ln in NOTES: out.append(NOTES[ln])
        out.append(ln)
    txt = "\n".join(out)
    open("final.s", "w").write(txt)
    build("final.s")
    open(OUT, "w").write(txt)
    print("written", len(txt), "bytes")
if __name__ == "__main__":
    main(NS=1, d=16, first=False)
```

```python
import sys, struct, math
from asmlib import Asm
from build import build, KN
from gen_v1 import kd, HEAD, SCALE_LOG2E
A2A_DATA = 0x200000
A2A_STAT = 0x400000

def gen(name, NS=2, d=8, ldf="nt", xmap="xcd", stamps=False, oob=False, maxspin=1<<18, force=None, out=True, chk=4,
        nohelp=False, poll="full", I=None, inbox=False, mkf="sc1", cut=None, outf="", strip=0, first=True, early=2, accpro=True, align=None, kfill=True):
    a = Asm()
    NT = 16 // NS
    I = I or 32 * NS
    blocked = (I == NS)
    assert NS == 2
    P = 32
    U = 2 if (d > 8 or (first and d > 6)) else 1
    assert 2 <= d <= 16 and NT % U == 0 and (NT // 2) % U == 0
    assert not first or d <= 8 * U - 2
    nst = [0]
    def stamp():
        if stamps:
            i = nst[0]; nst[0] += 1
            a(f"s_memrealtime s[{64+2*i}:{65+2*i}]")
    def stamp_out(n):
        if stamps:
            a("s_waitcnt vmcnt(0) lgkmcnt(0)")
            a("s_mov_b64 exec, 1")
            a(f"s_mul_i32 s60, s2, {NS+1}")
            a("s_add_u32 s60, s60, s50")
            a("s_lshl_b32 s60, s60, 6")
            a("s_add_u32 s60, s60, 0x100000")
            a("v_mov_b32 v10, s60")
            a("s_getreg_b32 s61, hwreg(HW_REG_XCC_ID, 0, 16)")
            a("v_mov_b32 v11, s61")
            a("global_store_dword v10, v11, s[22:23] offset:60")
            a("s_getreg_b32 s61, hwreg(HW_REG_HW_ID)")
            a("v_mov_b32 v11, s61")
            a("global_store_dword v10, v11, s[22:23] offset:56")
            a("s_nop 1")
            for i in range(n):
                a(f"v_mov_b32 v11, s{64+2*i}")
                a(f"global_store_dword v10, v11, s[22:23] offset:{4*i}")
                a("s_nop 1")
    vL, vAd, vV0, vSa, vT = 1, 2, 3, 4, 5
    MM, LL, CC, CC1, vSs, FB, vChk, CK = 12, 13, 14, 15, 16, 17, 18, 19
    QB, QB1 = 20, 24
    VS, VZ = 28, 32
    S, W = 36, 44
    T = 48
    ACC, ACZ = 80, 112
    AD0, AD1, ASt, APd, APs, AOut, AXo, AXi = 116, 117, 118, 119, 120, 121, 122, 123
    AXs = 11
    RB = 124
    NV = RB + 64 * U
    TA = [T, T+4]; TD = [T+8, T+12]
    SRD, SVS, SVZ = "s[24:27]", "s[32:35]", "s[36:39]"
    LDS_SC = 0
    LDS_S = LDS_SC + NS * 2048
    LDS_X = LDS_S + NS * NT * 2048 + 2048
    LDS = LDS_X + 2048 + 64
    a("s_cmp_ge_u32 s2, 256")
    a("s_cbranch_scc1 L_end")
    stamp()
    a("s_load_dwordx16 s[4:19], s[0:1], 0")
    a("s_load_dwordx4 s[20:23], s[0:1], 64")
    if xmap == "xcd":
        a("s_and_b32 s40, s2, 7"); a("s_lshr_b32 s41, s2, 3")
    else:
        a("s_lshr_b32 s40, s2, 5"); a("s_and_b32 s41, s2, 31")
    a(f"v_lshrrev_b32 v{vT}, 6, v0")
    a(f"v_and_b32 v{vL}, 63, v0")
    a(f"v_readfirstlane_b32 s50, v{vT}")
    a(f"v_lshrrev_b32 v{vT}, 4, v{vL}")
    a(f"v_and_b32 v{vT+1}, 3, v{vL}")
    a(f"v_bfe_u32 v{vT+2}, v{vL}, 2, 2")
    a(f"s_cmp_eq_u32 s50, {NS}")
    a("s_cbranch_scc1 L_helper")
    a(f"v_lshl_add_u32 v{vT+4}, v{vT}, 2, v{vT+1}")
    a(f"v_lshlrev_b32 v{vAd}, 4, v{vT+4}")
    a(f"v_lshl_add_u32 v{vAd}, v{vT+2}, 12, v{vAd}")
    if blocked:
        a(f"s_lshl_b32 s51, s41, 4"); a("s_add_u32 s51, s51, s50")
    else:
        a(f"s_lshl_b32 s51, s41, 1"); a("s_add_u32 s51, s51, s50")
    a("s_lshl_b32 s43, s51, 14")
    a(f"v_add_u32 v{vAd}, s43, v{vAd}")
    a("s_lshl_b32 s46, s40, 23")
    KSZ, SSZ = 1 << 23, 1 << 15
    if oob: a("s_mov_b32 s26, 0")
    elif blocked: a("s_add_u32 s26, s41, 1"); a("s_lshl_b32 s26, s26, 18")
    else: a(f"s_mov_b32 s26, {KSZ}")
    a("s_mov_b32 s27, 0x20000")
    a("s_waitcnt lgkmcnt(0)")
    stamp()
    a("s_add_u32 s24, s6, s46"); a("s_addc_u32 s25, s7, 0")
    def rest_of_setup():
        a(f"v_and_b32 v{vT+3}, 15, v{vL}")
        a(f"v_lshlrev_b32 v{vV0}, 4, v{vT+3}")
        a(f"v_lshl_add_u32 v{vV0}, v{vT}, 12, v{vV0}")
        a(f"v_add_u32 v{vV0}, s43, v{vV0}")
        a("s_add_u32 s28, s8, s46"); a("s_addc_u32 s29, s9, 0")
        a(f"v_lshlrev_b32 v{vZo}, 3, v{vT+4}")
        a(f"v_lshl_add_u32 v{vQo}, v{vT+2}, 8, v{vZo}")
        a("s_lshl_b32 s43, s40, 10")
        a(f"v_add_u32 v{vQo}, s43, v{vQo}")
        a("s_lshl_b32 s43, s40, 9")
        a(f"v_add_u32 v{vZo}, s43, v{vZo}")
        a(f"v_lshrrev_b32 v{vSo}, 2, v{vL}")
        a(f"v_mul_u32_u24 v{vSo}, {I*64}, v{vSo}")
        a(f"v_lshl_add_u32 v{vSo}, v{vT+1}, 4, v{vSo}")
        a("s_lshl_b32 s43, s51, 6")
        a(f"v_add_u32 v{vSo}, s43, v{vSo}")
        a("s_lshl_b32 s47, s40, 15")
        for srd, p in ((32, 14), (36, 16)):
            a(f"s_add_u32 s{srd}, s{p}, s47")
            a(f"s_addc_u32 s{srd+1}, s{p+1}, 0")
            a(f"s_mov_b32 s{srd+2}, {SSZ}")
            a(f"s_mov_b32 s{srd+3}, 0x20000")
    def lds_setup():
        a(f"s_lshl_b32 s43, s50, 11"); a(f"s_add_u32 s43, s43, {LDS_SC}")
        a(f"v_lshlrev_b32 v{vSs}, 4, v{vL}")
        a(f"v_add_u32 v{FB}, s43, v{vSs}")
        a(f"v_lshlrev_b32 v{vSa}, 4, v{vT}")
        a(f"v_add_u32 v{vSa}, s43, v{vSa}")
        a(f"s_mul_i32 s43, s50, {NT*2048}"); a(f"s_add_u32 s43, s43, {LDS_S}")
        a(f"v_add_u32 v{vSs}, s43, v{vSs}")
        a("s_mov_b32 s44, 0xaaaaaaaa")
        a("s_mov_b32 s45, 0xaaaaaaaa")
    vSo = MM
    vQo, vZo = vT+5, vT+6
    step = I * 16384
    def pair(pi, e):
        for i in range(2):
            r = RB + 64*pi + 8*e + 4*i
            a(f"buffer_load_dwordx4 v[{r}:{r+3}], v{vAd}, {SRD}, 0 offen offset:{e*512+i*256} {ldf}")
    lbl = [0]
    def issue(j, kphase):
        if j % 8 == 0:
            if kphase:
                lbl[0] += 1
                a("s_add_u32 s57, s57, 1")
                a(f"s_cmp_eq_u32 s57, {NT}")
                a(f"s_cbranch_scc1 L_tov{lbl[0]}")
                a(f"v_add_u32 v{vAd}, {step}, v{vAd}")
                a(f"s_branch L_adv{lbl[0]}")
                a(f"L_tov{lbl[0]}:")
                a("s_mov_b32 s24, s28"); a("s_mov_b32 s25, s29")
                a(f"v_mov_b32 v{vAd}, v{vV0}")
                a(f"L_adv{lbl[0]}:")
            else:
                a(f"v_add_u32 v{vAd}, {step}, v{vAd}")
        pair((j // 8) % U, j % 8)
    QR, KSR, KZR = ACC, ACC + 4, ACC + 12
    SVR, SZR = ACC + 20, ACC + 24
    a("s_mov_b32 s57, 0")
    for j in range(early): pair(0, j)
    rest_of_setup()
    for i in range(2):
        a(f"global_load_dwordx2 v[{QR+2*i}:{QR+2*i+1}], v{vQo}, s[4:5] offset:{128*i}")
    for g in range(2):
        for i in range(2):
            a(f"global_load_dwordx2 v[{KSR+4*g+2*i}:{KSR+4*g+2*i+1}], v{vZo}, s[10:11] offset:{256*g+128*i}")
            a(f"global_load_dwordx2 v[{KZR+4*g+2*i}:{KZR+4*g+2*i+1}], v{vZo}, s[12:13] offset:{256*g+128*i}")
    a(f"buffer_load_dwordx4 v[{SVR}:{SVR+3}], v{vSo}, {SVS}, 0 offen")
    a(f"buffer_load_dwordx4 v[{SZR}:{SZR+3}], v{vSo}, {SVZ}, 0 offen")
    for j in range(early, d): issue(j, True)
    stamp()
    lds_setup()
    a(f"s_waitcnt vmcnt({2*(d-early)})")
    a(f"ds_write_b128 v{FB}, v[{SVR}:{SVR+3}]")
    a(f"ds_write_b128 v{FB}, v[{SZR}:{SZR+3}] offset:1024")
    a(f"v_lshrrev_b32 v{vT}, 4, v{vL}")
    a(f"v_and_b32 v{vT+1}, 3, v{vL}")
    a(f"v_bfe_u32 v{vT+2}, v{vL}, 2, 2")
    a(f"v_lshl_add_u32 v{AD0}, v{vT}, 3, v{vT+2}")
    a(f"v_lshlrev_b32 v{AD0}, 11, v{AD0}")
    a(f"v_lshl_add_u32 v{AD0}, v{vT+1}, 4, v{AD0}")
    a("s_lshl_b32 s43, s40, 16"); a("s_lshl_b32 s48, s41, 6"); a("s_add_u32 s43, s43, s48"); a("s_lshl_b32 s48, s50, 13"); a("s_add_u32 s43, s43, s48"); a(f"s_add_u32 s43, s43, {A2A_DATA}")
    a(f"v_add_u32 v{AD0}, s43, v{AD0}")
    a(f"v_lshlrev_b32 v{ASt}, 8, v{vT}")
    a("s_lshl_b32 s43, s40, 10"); a("s_lshl_b32 s48, s41, 3"); a("s_add_u32 s43, s43, s48"); a(f"s_add_u32 s43, s43, {A2A_STAT}")
    a(f"v_add_u32 v{ASt}, s43, v{ASt}")
    a(f"v_lshrrev_b32 v{APs}, 1, v{vL}")
    a(f"v_and_b32 v{vT+3}, 1, v{vL}")
    a(f"v_lshlrev_b32 v{APd}, 6, v{APs}")
    a(f"v_lshl_add_u32 v{APd}, v{vT+3}, 4, v{APd}")
    a("s_lshl_b32 s43, s40, 5"); a("s_add_u32 s43, s43, s41"); a("s_lshl_b32 s43, s43, 11"); a("s_lshl_b32 s48, s50, 5"); a("s_add_u32 s43, s43, s48"); a(f"s_add_u32 s43, s43, {A2A_DATA}")
    a(f"v_add_u32 v{APd}, s43, v{APd}")
    a("s_lshr_b32 s48, s41, 3"); a("s_lshl_b32 s49, s40, 2"); a("s_add_u32 s49, s49, s48")
    a("s_lshl_b32 s43, s49, 8"); a(f"s_add_u32 s43, s43, {A2A_STAT}")
    a(f"v_lshlrev_b32 v{APs}, 3, v{APs}")
    a(f"v_add_u32 v{APs}, s43, v{APs}")
    a("s_and_b32 s48, s41, 7"); a("s_lshl_b32 s48, s48, 5"); a("s_lshl_b32 s43, s49, 8"); a("s_add_u32 s43, s43, s48"); a("s_lshl_b32 s48, s50, 4"); a("s_add_u32 s43, s43, s48")
    a(f"v_lshlrev_b32 v{AOut}, 3, v{vL}")
    a(f"v_add_u32 v{AOut}, s43, v{AOut}")
    a(f"v_lshlrev_b32 v{AXo}, 4, v{vL}")
    a("s_lshl_b32 s43, s50, 10"); a(f"s_add_u32 s48, s43, {LDS_X}"); a("s_xor_b32 s43, s43, 1024"); a(f"s_add_u32 s43, s43, {LDS_X}")
    a(f"v_add_u32 v{AXi}, s43, v{AXo}")
    a(f"v_add_u32 v{AXo}, s48, v{AXo}")
    a(f"v_lshlrev_b32 v{AXs}, 4, v{vT+2}")
    a("s_lshl_b32 s43, s50, 3"); a(f"s_add_u32 s43, s43, {LDS_X + 2048}")
    a(f"v_add_u32 v{AXs}, s43, v{AXs}")
    a(f"v_lshlrev_b32 v{AD1}, 4, v{vT}")
    a(f"v_add_u32 v{AD1}, {LDS_X + 2048}, v{AD1}")
    a("s_getreg_b32 s53, hwreg(HW_REG_XCC_ID, 0, 4)")
    a("s_mul_i32 s54, s53, s53")
    a("s_lshl_b32 s54, s54, 18")
    a("s_lshl_b32 s53, s53, 8")
    a("s_add_u32 s53, s53, s54")
    a("s_add_u32 s53, s53, 1")
    a("s_lshl_b32 s54, s53, 5")
    a(f"s_mov_b32 s43, {SCALE_LOG2E}")
    def post(D, dst):
        a(f"v_cndmask_b32 v{vT}, v{D}, v{D+1}, s[44:45]")
        a(f"v_cndmask_b32 v{vT+1}, v{D+2}, v{D+3}, s[44:45]")
        a(f"v_add_f32_dpp v{vT}, v{vT+1}, v{vT} quad_perm:[2,3,0,1] row_mask:0xf bank_mask:0xf")
        a(f"v_add_f32_dpp v{dst}, v{vT}, v{vT} quad_perm:[1,0,3,2] row_mask:0xf bank_mask:0xf")
    for g in range(2):
        qb = (QB, QB1)[g]
        for k in range(4):
            lo, hi = T, T+1
            a(f"v_lshlrev_b32 v{lo}, 16, v{QR+k}")
            a(f"v_and_b32 v{hi}, 0xffff0000, v{QR+k}")
            a(f"v_lshlrev_b32 v{T+2}, 16, v{KSR+4*g+k}")
            a(f"v_and_b32 v{T+3}, 0xffff0000, v{KSR+4*g+k}")
            a(f"v_mul_f32 v{lo}, v{lo}, v{T+2}")
            a(f"v_mul_f32 v{hi}, v{hi}, v{T+3}")
            a(f"v_mul_f32 v{lo}, s43, v{lo}")
            a(f"v_mul_f32 v{hi}, s43, v{hi}")
            a(f"v_cvt_pk_bf16_f32 v{qb+k}, v{lo}, v{hi}")
        a(f"v_mfma_f32_16x16x32_bf16 v[{T+4+4*g}:{T+7+4*g}], v[{KZR+4*g}:{KZR+4*g+3}], v[{qb}:{qb+3}], 0")
    for g in range(2):
        post(T+4+4*g, (CC, CC1)[g])
    a(f"v_mov_b32 v{MM}, 0xff800000")
    a(f"v_mov_b32 v{LL}, 0")
    a(f"v_mov_b32 v{vChk}, 0")
    if accpro:
        for r in range(ACC, ACC+36): a(f"v_mov_b32 v{r}, 0")
    half_sw = (NT // 2) if not blocked else None
    if blocked:
        a("s_cmp_lt_u32 s41, 16")
        a("s_cbranch_scc1 L_g0")
        for k in range(4): a(f"v_mov_b32 v{QB+k}, v{QB1+k}")
        a(f"v_mov_b32 v{CC}, v{CC1}")
        a("L_g0:")
    a(f"v_mov_b32 v{CK}, v{CC}")
    a("s_mov_b32 s42, 0")
    full = a
    def filt(text):
        op = text.split()[0]
        if strip >= 1 and op == "v_cvt_f32_i32": return
        if strip >= 2 and op in ("v_cvt_pk_bf16_f32", "v_mfma_f32_16x16x32_bf16", "v_cndmask_b32", "v_add_f32_dpp"): return
        if strip >= 3 and op.startswith("v_") and op not in ("v_add_u32", "v_mov_b32", "v_subrev_u32"): return
        full(text)
    a = filt
    if align: a(f".p2align {align}")
    a("L_kloop:")
    if half_sw is not None:
        a(f"s_cmp_eq_u32 s42, {half_sw}")
        a("s_cbranch_scc0 L_nosw")
        for k in range(4): a(f"v_mov_b32 v{QB+k}, v{QB1+k}")
        a(f"v_mov_b32 v{CK}, v{CC1}")
        a("L_nosw:")
    for pi in range(U):
        for e in range(8):
            r = RB + 64*pi + 8*e
            ta, td, pd = TA[e&1], TD[e&1], TD[(e-1)&1]
            a(f"s_waitcnt vmcnt({2*(d-1)})")
            if first: issue(8*pi + e + d, True)
            for x in range(8): a(f"v_cvt_f32_i32 v{r+x}, v{r+x}")
            if first and kfill and e > 0:
                a(f"v_cndmask_b32 v{vT}, v{pd}, v{pd+1}, s[44:45]")
                a(f"v_cndmask_b32 v{vT+1}, v{pd+2}, v{pd+3}, s[44:45]")
                a(f"v_cvt_pk_bf16_f32 v{ta}, v{r}, v{r+1}")
                a(f"v_cvt_pk_bf16_f32 v{ta+1}, v{r+2}, v{r+3}")
                a(f"v_add_f32_dpp v{vT}, v{vT+1}, v{vT} quad_perm:[2,3,0,1] row_mask:0xf bank_mask:0xf")
                a(f"v_cvt_pk_bf16_f32 v{ta+2}, v{r+4}, v{r+5}")
                a(f"v_cvt_pk_bf16_f32 v{ta+3}, v{r+6}, v{r+7}")
                a(f"v_add_f32_dpp v{S+e-1}, v{vT}, v{vT} quad_perm:[1,0,3,2] row_mask:0xf bank_mask:0xf")
                if e >= 2: a(f"v_max_f32 v{vT+2}, v{vT+2}, v{S+e-2}")
                else: a(f"v_mov_b32 v{vT+2}, 0xff800000")
            else:
                if e > 0:
                    a(f"v_cndmask_b32 v{vT}, v{pd}, v{pd+1}, s[44:45]")
                    a(f"v_cndmask_b32 v{vT+1}, v{pd+2}, v{pd+3}, s[44:45]")
                a(f"v_cvt_pk_bf16_f32 v{ta}, v{r}, v{r+1}")
                a(f"v_cvt_pk_bf16_f32 v{ta+1}, v{r+2}, v{r+3}")
                if e > 0: a(f"v_add_f32_dpp v{vT}, v{vT+1}, v{vT} quad_perm:[2,3,0,1] row_mask:0xf bank_mask:0xf")
                a(f"v_cvt_pk_bf16_f32 v{ta+2}, v{r+4}, v{r+5}")
                a(f"v_cvt_pk_bf16_f32 v{ta+3}, v{r+6}, v{r+7}")
                if e > 0: a(f"v_add_f32_dpp v{S+e-1}, v{vT}, v{vT} quad_perm:[1,0,3,2] row_mask:0xf bank_mask:0xf")
            if not first: issue(8*pi + e + d, True)
            a(f"v_mfma_f32_16x16x32_bf16 v[{td}:{td+3}], v[{ta}:{ta+3}], v[{QB}:{QB+3}], 0")
        t0 = vT+2
        pd = TD[1]
        if first and kfill:
            a(f"ds_write_b128 v{vSs}, v[{S}:{S+3}]")
            a(f"v_max_f32 v{t0}, v{t0}, v{S+6}")
            a("s_nop 5")
        else:
            a(f"v_max3_f32 v{t0}, v{S}, v{S+1}, v{S+2}")
            a(f"ds_write_b128 v{vSs}, v[{S}:{S+3}]")
            a(f"v_max3_f32 v{t0}, v{t0}, v{S+3}, v{S+4}")
            a(f"v_max3_f32 v{t0}, v{t0}, v{S+5}, v{S+6}")
            a("s_nop 3")
        a(f"v_cndmask_b32 v{vT}, v{pd}, v{pd+1}, s[44:45]")
        a(f"v_cndmask_b32 v{vT+1}, v{pd+2}, v{pd+3}, s[44:45]")
        a(f"v_sub_f32 v{t0}, v{t0}, v{CK}")
        a(f"v_max_f32 v{MM}, v{MM}, v{t0}")
        a(f"v_add_f32_dpp v{vT}, v{vT+1}, v{vT} quad_perm:[2,3,0,1] row_mask:0xf bank_mask:0xf")
        a("s_nop 1")
        a(f"v_add_f32_dpp v{S+7}, v{vT}, v{vT} quad_perm:[1,0,3,2] row_mask:0xf bank_mask:0xf")
        a(f"v_sub_f32 v{t0}, v{S+7}, v{CK}")
        a(f"ds_write_b128 v{vSs}, v[{S+4}:{S+7}] offset:1024")
        a(f"v_max_f32 v{MM}, v{MM}, v{t0}")
        a(f"v_add_u32 v{vSs}, 2048, v{vSs}")
    a(f"s_add_u32 s42, s42, {U}")
    a(f"s_cmp_lt_u32 s42, {NT}")
    a("s_cbranch_scc1 L_kloop")
    stamp()
    a(f"v_subrev_u32 v{vSs}, {NT*2048}, v{vSs}")
    a(f"v_mov_b32 v{CK}, v{CC}")
    a(f"v_mov_b32 v{vT}, v{MM}")
    a(f"ds_read_b128 v[{S}:{S+3}], v{vSs}")
    a(f"ds_read_b128 v[{S+4}:{S+7}], v{vSs} offset:1024")
    a(f"v_permlane16_swap_b32 v{MM}, v{vT}")
    a(f"v_max_f32 v{MM}, v{MM}, v{vT}")
    a(f"ds_read_b128 v[{VS}:{VS+3}], v{vSa}")
    a(f"v_mov_b32 v{vT}, v{MM}")
    a(f"ds_read_b128 v[{VZ}:{VZ+3}], v{vSa} offset:1024")
    a(f"v_add_u32 v{vSs}, 2048, v{vSs}")
    a(f"v_permlane32_swap_b32 v{MM}, v{vT}")
    a(f"v_max_f32 v{MM}, v{MM}, v{vT}")
    if not accpro:
        for r in range(ACC, ACC+36): a(f"v_mov_b32 v{r}, 0")
    a("s_mov_b32 s42, 0")
    if align: a(f".p2align {align}")
    a("L_vloop:")
    for pi in range(U):
        if pi == 0:
            a(f"s_cmp_eq_u32 s42, {max(NT-max(chk,U), 0) // U * U}")
            a("s_cbranch_scc0 L_nochk")
            a(f"s_lshl_b32 s43, s40, 5")
            a(f"v_mov_b32 v{vT}, s43")
            a(f"global_load_dword v{vChk}, v{vT}, s[20:21] sc1")
            a("L_nochk:")
        mc = FB
        a(f"v_add_f32 v{mc}, v{MM}, v{CK}")
        a("s_waitcnt lgkmcnt(0)")
        for k in range(8): a(f"v_sub_f32 v{S+k}, v{S+k}, v{mc}")
        for k in range(4):
            a(f"v_exp_f32 v{S+2*k}, v{S+2*k}")
            a(f"v_lshlrev_b32 v{T+2*k}, 16, v{VS+k}")
            a(f"v_exp_f32 v{S+2*k+1}, v{S+2*k+1}")
            a(f"v_and_b32 v{T+2*k+1}, 0xffff0000, v{VS+k}")
        for k in range(4):
            a(f"v_mul_f32 v{T+2*k}, v{T+2*k}, v{S+2*k}")
            a(f"v_mul_f32 v{T+2*k+1}, v{T+2*k+1}, v{S+2*k+1}")
            a(f"v_add_f32 v{LL}, v{LL}, v{S+2*k}")
            a(f"v_cvt_pk_bf16_f32 v{W+k}, v{T+2*k}, v{T+2*k+1}")
            a(f"v_add_f32 v{LL}, v{LL}, v{S+2*k+1}")
        a(f"v_add_u32 v{vSa}, 64, v{vSa}")
        a(f"ds_read_b128 v[{S}:{S+3}], v{vSs}")
        a(f"v_mfma_f32_16x16x32_bf16 v[{ACZ}:{ACZ+3}], v[{W}:{W+3}], v[{VZ}:{VZ+3}], v[{ACZ}:{ACZ+3}]")
        a(f"ds_read_b128 v[{S+4}:{S+7}], v{vSs} offset:1024")
        a(f"ds_read_b128 v[{VS}:{VS+3}], v{vSa}")
        for k in range(4):
            r0 = RB + 64*pi + 8*(2*k)
            r1 = r0 + 8
            a(f"s_waitcnt vmcnt({2*(d-2)})")
            if first: issue(8*pi + 2*k + d, False); issue(8*pi + 2*k + 1 + d, False)
            for x in range(8):
                a(f"v_cvt_f32_i32 v{r0+x}, v{r0+x}")
                a(f"v_cvt_f32_i32 v{r1+x}, v{r1+x}")
            if k == 0:
                a(f"ds_read_b128 v[{VZ}:{VZ+3}], v{vSa} offset:1024")
                a(f"v_add_u32 v{vSs}, 2048, v{vSs}")
            for half in range(2):
                for c in range(4):
                    a(f"v_cvt_pk_bf16_f32 v{T+16*half+4*c+k}, v{r0+4*half+c}, v{r1+4*half+c}")
            if not first: issue(8*pi + 2*k + d, False); issue(8*pi + 2*k + 1 + d, False)
        for half in range(2):
            for c in range(4):
                dd = ACC + 16*half + 4*c
                a(f"v_mfma_f32_16x16x32_bf16 v[{dd}:{dd+3}], v[{W}:{W+3}], v[{T+16*half+4*c}:{T+16*half+4*c+3}], v[{dd}:{dd+3}]")
        if half_sw is not None and pi == U - 1:
            a(f"s_cmp_eq_u32 s42, {half_sw - U}")
            a("s_cbranch_scc0 L_nosw2")
            a(f"v_mov_b32 v{CK}, v{CC1}")
            a("L_nosw2:")
    a(f"s_add_u32 s42, s42, {U}")
    a(f"s_cmp_lt_u32 s42, {NT}")
    a("s_cbranch_scc1 L_vloop")
    stamp()
    a = full
    if cut == "notail": a("s_branch L_send")
    KEEP, GIVE, RECV, STQ, SP = S, S + 4, T, T + 4, W
    a(f"v_mov_b32 v{vT}, v{LL}")
    a(f"v_readfirstlane_b32 s48, v{vChk}")
    a(f"v_permlane16_swap_b32 v{LL}, v{vT}")
    a(f"v_add_f32 v{LL}, v{LL}, v{vT}")
    a(f"v_mov_b32 v{vT}, v{LL}")
    a("s_cmp_eq_u32 s50, 0")
    a("s_waitcnt lgkmcnt(0)")
    a(f"v_permlane32_swap_b32 v{LL}, v{vT}")
    a(f"v_add_f32 v{SP+1}, v{LL}, v{vT}")
    a(f"v_mov_b32 v{SP}, v{MM}")
    a("s_cbranch_scc1 L_w0")
    for c in range(4): a(f"v_sub_f32 v{GIVE+c}, v{ACC+4*c}, v{ACZ}")
    for c in range(4): a(f"v_sub_f32 v{KEEP+c}, v{ACC+16+4*c}, v{ACZ}")
    a("s_branch L_wx")
    a("L_w0:")
    for c in range(4): a(f"v_sub_f32 v{GIVE+c}, v{ACC+16+4*c}, v{ACZ}")
    for c in range(4): a(f"v_sub_f32 v{KEEP+c}, v{ACC+4*c}, v{ACZ}")
    a("L_wx:")
    a(f"ds_write_b128 v{AXo}, v[{GIVE}:{GIVE+3}]")
    a("s_mov_b64 exec, 0x1111")
    a(f"ds_write_b64 v{AXs}, v[{SP}:{SP+1}]")
    a("s_mov_b64 exec, -1")
    a("s_and_b32 s55, s48, 0xff")
    a("s_waitcnt lgkmcnt(0)")
    a("s_barrier")
    a(f"ds_read_b128 v[{STQ}:{STQ+3}], v{AD1}")
    a(f"ds_read_b128 v[{RECV}:{RECV+3}], v{AXi}")
    a("s_mov_b32 s43, 0xfffffffe")
    a("s_waitcnt lgkmcnt(1)")
    a(f"v_max_f32 v{vT}, v{STQ}, v{STQ+2}")
    a(f"v_sub_f32 v{STQ}, v{STQ}, v{vT}")
    a(f"v_sub_f32 v{STQ+2}, v{STQ+2}, v{vT}")
    a(f"v_exp_f32 v{STQ}, v{STQ}")
    a(f"v_exp_f32 v{STQ+2}, v{STQ+2}")
    a(f"v_min_u32 v{SP}, s43, v{vT}")
    a("s_cmp_eq_u32 s50, 0")
    a(f"v_mul_f32 v{vT+1}, v{STQ}, v{STQ+1}")
    a(f"v_fmac_f32 v{vT+1}, v{STQ+2}, v{STQ+3}")
    a("s_cbranch_scc1 L_f0")
    a(f"v_swap_b32 v{STQ}, v{STQ+2}")
    a("L_f0:")
    a(f"v_min_u32 v{SP+1}, s43, v{vT+1}")
    a("s_waitcnt lgkmcnt(0)")
    for c in range(4): a(f"v_mul_f32 v{KEEP+c}, v{KEEP+c}, v{STQ}")
    for c in range(4): a(f"v_fmac_f32 v{KEEP+c}, v{RECV+c}, v{STQ+2}")
    for c in range(4): a(f"v_min_u32 v{KEEP+c}, s43, v{KEEP+c}")
    a("s_cmp_ge_u32 s55, 32")
    a("s_cbranch_scc1 L_started")
    a("s_mov_b32 s52, 0")
    a("s_lshl_b32 s43, s40, 5")
    a(f"v_mov_b32 v{vT}, s43")
    a("L_spin0:")
    a(f"global_load_dword v{vChk}, v{vT}, s[20:21] sc1")
    a("s_add_u32 s52, s52, 1")
    a("s_waitcnt vmcnt(0)")
    a(f"v_readfirstlane_b32 s48, v{vChk}")
    a(f"s_cmp_gt_u32 s52, {maxspin}")
    a("s_cbranch_scc1 L_started")
    a("s_and_b32 s55, s48, 0xff")
    a("s_cmp_ge_u32 s55, 32")
    a("s_cbranch_scc0 L_spin0")
    a("L_started:")
    if force == "slow": a("s_branch L_pslow")
    a("s_cmp_eq_u32 s48, s54")
    a("s_cbranch_scc0 L_pslow")
    a(f"global_store_dwordx4 v{AD0}, v[{KEEP}:{KEEP+3}], s[22:23]")
    a("s_cmp_eq_u32 s50, 0")
    a("s_cbranch_scc0 L_pdone")
    a("s_mov_b32 exec_lo, 0x00010001"); a("s_mov_b32 exec_hi, 0x00010001")
    a(f"global_store_dwordx2 v{ASt}, v[{SP}:{SP+1}], s[22:23]")
    a("s_branch L_pdone")
    a("L_pslow:")
    a(f"global_store_dwordx4 v{AD0}, v[{KEEP}:{KEEP+3}], s[22:23] sc1")
    a("s_cmp_eq_u32 s50, 0")
    a("s_cbranch_scc0 L_pdone")
    a("s_mov_b32 exec_lo, 0x00010001"); a("s_mov_b32 exec_hi, 0x00010001")
    a(f"global_store_dwordx2 v{ASt}, v[{SP}:{SP+1}], s[22:23] sc1")
    a("L_pdone:")
    a("s_mov_b64 exec, -1")
    stamp()
    if cut == "pub": a("s_branch L_send")
    PD, PS = T + 8, T + 12
    mx, t, f0, ls = vT+2, vT+1, vT+3, vT+5
    a("s_mov_b32 s52, 0")
    a("L_poll:")
    a(f"global_load_dwordx2 v[{PS}:{PS+1}], v{APs}, s[22:23] sc1")
    a(f"global_load_dwordx4 v[{PD}:{PD+3}], v{APd}, s[22:23] sc1")
    a("s_add_u32 s52, s52, 1")
    a(f"s_cmp_gt_u32 s52, {maxspin}")
    a("s_cbranch_scc1 L_polled0")
    a("s_waitcnt vmcnt(1)")
    a(f"v_max_u32 v{vT}, v{PS}, v{PS+1}")
    a(f"v_max_f32_dpp v{mx}, v{PS}, v{PS} row_ror:2 row_mask:0xf bank_mask:0xf")
    a("s_waitcnt vmcnt(0)")
    a(f"v_max3_u32 v{vT}, v{vT}, v{PD}, v{PD+1}")
    a(f"v_max_f32_dpp v{mx}, v{mx}, v{mx} row_ror:4 row_mask:0xf bank_mask:0xf")
    a(f"v_max3_u32 v{vT}, v{vT}, v{PD+2}, v{PD+3}")
    a(f"v_cmp_eq_u32 vcc, -1, v{vT}")
    a(f"v_max_f32_dpp v{mx}, v{mx}, v{mx} row_ror:8 row_mask:0xf bank_mask:0xf")
    a("s_nop 3")
    a("s_cbranch_vccnz L_poll")
    a("L_polled0:")
    a("s_waitcnt vmcnt(0)")
    stamp()
    X = T + 16
    a(f"v_mov_b32 v{t}, v{mx}")
    a(f"v_permlane16_swap_b32 v{mx}, v{t}")
    a(f"v_max_f32 v{mx}, v{mx}, v{t}")
    a(f"v_mov_b32 v{t}, v{mx}")
    a(f"v_permlane32_swap_b32 v{mx}, v{t}")
    a(f"v_max_f32 v{mx}, v{mx}, v{t}")
    a(f"v_sub_f32 v{f0}, v{PS}, v{mx}")
    a(f"v_exp_f32 v{f0}, v{f0}")
    R = [PS+1, PD, PD+1, PD+2, PD+3]
    for x in R: a(f"v_mul_f32 v{x}, v{x}, v{f0}")
    for r in (2, 4, 8):
        for x in R: a(f"v_add_f32_dpp v{x}, v{x}, v{x} row_ror:{r} row_mask:0xf bank_mask:0xf")
    for sw in ("v_permlane16_swap_b32", "v_permlane32_swap_b32"):
        for k, x in enumerate(R): a(f"v_mov_b32 v{X+k}, v{x}")
        for k, x in enumerate(R): a(f"{sw} v{x}, v{X+k}")
        for k, x in enumerate(R): a(f"v_add_f32 v{x}, v{x}, v{X+k}")
    a(f"v_rcp_f32 v{ls}, v{PS+1}")
    a("s_mov_b64 exec, 3")
    for c in range(4): a(f"v_mul_f32 v{PD+c}, v{PD+c}, v{ls}")
    a(f"v_cvt_pk_bf16_f32 v{PD}, v{PD}, v{PD+1}")
    a(f"v_cvt_pk_bf16_f32 v{PD+1}, v{PD+2}, v{PD+3}")
    a(f"global_store_dwordx2 v{AOut}, v[{PD}:{PD+1}], s[18:19] {outf}")
    stamp()
    a("L_send:")
    nstream = nst[0]
    stamp_out(nstream)
    a("s_endpgm")
    nst[0] = 1
    a("L_helper:")
    vPd, vSt, MK = 20, 21, 24
    a("s_lshl_b32 s43, s40, 5"); a("s_add_u32 s43, s43, s41"); a("s_lshl_b32 s43, s43, 11"); a(f"s_add_u32 s43, s43, {A2A_DATA}")
    a(f"v_lshlrev_b32 v{vPd}, 4, v{vL}")
    a(f"v_add_u32 v{vPd}, s43, v{vPd}")
    a(f"v_lshlrev_b32 v{vSt}, 8, v{vT}")
    a("s_lshl_b32 s43, s40, 10"); a("s_lshl_b32 s48, s41, 3"); a("s_add_u32 s43, s43, s48"); a(f"s_add_u32 s43, s43, {A2A_STAT}")
    a(f"v_add_u32 v{vSt}, s43, v{vSt}")
    for k in range(4): a(f"v_mov_b32 v{MK+k}, -1")
    a("s_getreg_b32 s53, hwreg(HW_REG_XCC_ID, 0, 4)")
    a("s_mul_i32 s54, s53, s53")
    a("s_lshl_b32 s54, s54, 18")
    a("s_lshl_b32 s53, s53, 8")
    a("s_add_u32 s53, s53, s54")
    a("s_add_u32 s53, s53, 1")
    a("s_lshl_b32 s43, s40, 5")
    a(f"v_mov_b32 v28, s43")
    a(f"v_mov_b32 v29, s53")
    a("s_waitcnt lgkmcnt(0)")
    stamp()
    if nohelp: a("s_branch L_hend")
    for k in range(2):
        a(f"global_store_dwordx4 v{vPd}, v[{MK}:{MK+3}], s[22:23] offset:{1024*k} {mkf}")
    a("s_mov_b32 exec_lo, 0x00010001"); a("s_mov_b32 exec_hi, 0x00010001")
    a(f"global_store_dwordx2 v{vSt}, v[{MK}:{MK+1}], s[22:23] sc1")
    a("s_waitcnt vmcnt(0)")
    a("s_mov_b64 exec, 1")
    a("global_atomic_add v28, v29, s[20:21] sc1")
    stamp()
    a("L_hend:")
    stamp_out(nst[0])
    a("L_end:")
    a("s_endpgm")
    body = a.finalize()
    txt = HEAD + f"; @launch grid=(256,1,1) block=({64*(NS+1)},1,1) lds={LDS}\n"
    txt += f'.amdgcn_target "amdgcn-amd-amdhsa--gfx950"\n.text\n.globl {KN}\n.p2align 8\n.type {KN},@function\n{KN}:\n' + body
    txt += '.section .rodata,"a"\n.p2align 6\n' + kd(KN, max(NV, 120))
    open(name + ".s", "w").write(txt)
    build(name + ".s")
    if out: print(name, "pads:", a.pads, "stamps:", nstream, nst[0], "vgprs", NV, "lds", LDS)
if __name__ == "__main__":
    V = eval(open(sys.argv[1]).read())
    names = []
    for nm, v in V:
        gen(nm, **v); names.append(nm)
    print(" ".join(n + ".co" for n in names))
```

```python
import sys, re
import gen_v13
from build import build
OUT = "standalone__kv_cache_quant_int4_int2_kv_with_per_channel_or_per_token_scales__decode.s"
DESC = """;
;
"""
NOTES = {
 "L_kloop:": "; ---- K phase: two tiles per trip (ring slots 0-7, 8-15); each step waits for its pair and issues the pair 12 ahead",
 "L_vloop:": "; ---- V phase: weights of the tile from the parked logits, then 4 steps of two token pairs, then 9 MFMAs",
 "L_spin0:": "; rare: the sign-in counter was not complete when sampled during the stream",
 "L_started:": "; all 32 inboxes of this head are invalidated; publish through L2 (same die) or write-through (any placement)",
 "L_poll:": "; gather (max, sum) and 8 partial outputs from the 32 producers until no invalid word is left",
 "L_polled0:": "; merge the 32 partials, normalise, store 8 bf16 outputs",
 "L_w0:": "; wave 0 keeps d 0..63 and hands d 64..127 to wave 1 (above: the other way round)",
 "L_helper:": "; ---- wave 2: invalidate this workgroup's inbox and stat slots, wait for the stores, sign in",
}
def main(**kw):
    gen_v13.gen("final_tmp", out=False, **kw)
    s = open("final_tmp.s").read()
    lines = s.split("\n")
    out = []
    for ln in lines:
        if ln.startswith(".amdgcn_target"): out.append(DESC.rstrip("\n"))
        if ln in NOTES: out.append(NOTES[ln])
        out.append(ln)
    txt = "\n".join(out)
    open("final.s", "w").write(txt)
    build("final.s")
    open(OUT, "w").write(txt)
    print("written", len(txt), "bytes")
if __name__ == "__main__":
    main(d=12, jb=True, early=4)
```

```python
import sys, struct, math
from asmlib import Asm
from build import build, KN
from gen_v1 import kd, HEAD, SCALE_LOG2E
A2A_DATA = 0x200000
A2A_STAT = 0x400000

def gen(name, NS=2, d=8, ldf="nt", xmap="xcd", stamps=False, oob=False, maxspin=1<<18, force=None, out=True, chk=4,
        nohelp=False, poll="full", I=None, inbox=False, mkf="sc1", cut=None, outf="", strip=0, first=True, early=2, accpro=True, align=None, kfill=True, fspin=False, jb=False, skipl=False, prio=0, dly=0, mkonly=None):
    a = Asm()
    NT = 16 // NS
    I = I or 32 * NS
    blocked = (I == NS)
    assert NS == 2
    P = 32
    U = 2 if (d > 8 or (first and d > 6)) else 1
    assert 2 <= d <= 16 and NT % U == 0 and (NT // 2) % U == 0
    assert not first or d <= 8 * U - 2
    nst = [0]
    def stamp():
        if stamps:
            i = nst[0]; nst[0] += 1
            a(f"s_memrealtime s[{64+2*i}:{65+2*i}]")
    def stamp_out(n):
        if stamps:
            a("s_waitcnt vmcnt(0) lgkmcnt(0)")
            a("s_mov_b64 exec, 1")
            a(f"s_mul_i32 s60, s2, {NS+1}")
            a("s_add_u32 s60, s60, s50")
            a("s_lshl_b32 s60, s60, 6")
            a("s_add_u32 s60, s60, 0x100000")
            a("v_mov_b32 v10, s60")
            a("s_getreg_b32 s61, hwreg(HW_REG_XCC_ID, 0, 16)")
            a("v_mov_b32 v11, s61")
            a("global_store_dword v10, v11, s[22:23] offset:60")
            a("s_getreg_b32 s61, hwreg(HW_REG_HW_ID)")
            a("v_mov_b32 v11, s61")
            a("global_store_dword v10, v11, s[22:23] offset:56")
            a("s_nop 1")
            for i in range(n):
                a(f"v_mov_b32 v11, s{64+2*i}")
                a(f"global_store_dword v10, v11, s[22:23] offset:{4*i}")
                a("s_nop 1")
    vL, vAd, vV0, vSa, vT = 1, 2, 3, 4, 5
    MM, LL, CC, CC1, vSs, FB, vChk, CK = 12, 13, 14, 15, 16, 17, 18, 19
    QB, QB1 = 20, 24
    VS, VZ = 28, 32
    S, W = 36, 44
    T = 48
    ACC, ACZ = 80, 112
    AD0, AD1, ASt, APd, APs, AOut, AXo, AXi = 116, 117, 118, 119, 120, 121, 122, 123
    AXs = 11
    RB = 124
    NV = RB + 64 * U
    TA = [T, T+4]; TD = [T+8, T+12]
    SRD, SVS, SVZ = "s[24:27]", "s[32:35]", "s[36:39]"
    LDS_SC = 0
    LDS_S = LDS_SC + NS * 2048
    LDS_X = LDS_S + NS * NT * 2048 + 2048
    LDS = LDS_X + 2048 + 64
    a("s_cmp_ge_u32 s2, 256")
    a("s_cbranch_scc1 L_end")
    stamp()
    a("s_load_dwordx16 s[4:19], s[0:1], 0")
    a("s_load_dwordx4 s[20:23], s[0:1], 64")
    if xmap == "xcd":
        a("s_and_b32 s40, s2, 7"); a("s_lshr_b32 s41, s2, 3")
    else:
        a("s_lshr_b32 s40, s2, 5"); a("s_and_b32 s41, s2, 31")
    a(f"v_lshrrev_b32 v{vT}, 6, v0")
    a(f"v_and_b32 v{vL}, 63, v0")
    a(f"v_readfirstlane_b32 s50, v{vT}")
    a(f"v_lshrrev_b32 v{vT}, 4, v{vL}")
    a(f"v_and_b32 v{vT+1}, 3, v{vL}")
    a(f"v_bfe_u32 v{vT+2}, v{vL}, 2, 2")
    a(f"s_cmp_eq_u32 s50, {NS}")
    a("s_cbranch_scc1 L_helper")
    if prio: a(f"s_setprio {prio}")
    a(f"v_lshl_add_u32 v{vT+4}, v{vT}, 2, v{vT+1}")
    a(f"v_lshlrev_b32 v{vAd}, 4, v{vT+4}")
    a(f"v_lshl_add_u32 v{vAd}, v{vT+2}, 12, v{vAd}")
    if blocked:
        a(f"s_lshl_b32 s51, s41, 4"); a("s_add_u32 s51, s51, s50")
    else:
        if jb: a(f"s_lshl_b32 s51, s50, 5"); a("s_add_u32 s51, s51, s41")
        else: a(f"s_lshl_b32 s51, s41, 1"); a("s_add_u32 s51, s51, s50")
    a("s_lshl_b32 s43, s51, 14")
    a(f"v_add_u32 v{vAd}, s43, v{vAd}")
    a("s_lshl_b32 s46, s40, 23")
    KSZ, SSZ = 1 << 23, 1 << 15
    if oob: a("s_mov_b32 s26, 0")
    elif blocked: a("s_add_u32 s26, s41, 1"); a("s_lshl_b32 s26, s26, 18")
    else: a(f"s_mov_b32 s26, {KSZ}")
    a("s_mov_b32 s27, 0x20000")
    a("s_waitcnt lgkmcnt(0)")
    stamp()
    a("s_add_u32 s24, s6, s46"); a("s_addc_u32 s25, s7, 0")
    def rest_of_setup():
        a(f"v_and_b32 v{vT+3}, 15, v{vL}")
        a(f"v_lshlrev_b32 v{vV0}, 4, v{vT+3}")
        a(f"v_lshl_add_u32 v{vV0}, v{vT}, 12, v{vV0}")
        a(f"v_add_u32 v{vV0}, s43, v{vV0}")
        a("s_add_u32 s28, s8, s46"); a("s_addc_u32 s29, s9, 0")
        a(f"v_lshlrev_b32 v{vZo}, 3, v{vT+4}")
        a(f"v_lshl_add_u32 v{vQo}, v{vT+2}, 8, v{vZo}")
        a("s_lshl_b32 s43, s40, 10")
        a(f"v_add_u32 v{vQo}, s43, v{vQo}")
        a("s_lshl_b32 s43, s40, 9")
        a(f"v_add_u32 v{vZo}, s43, v{vZo}")
        a(f"v_lshrrev_b32 v{vSo}, 2, v{vL}")
        a(f"v_mul_u32_u24 v{vSo}, {I*64}, v{vSo}")
        a(f"v_lshl_add_u32 v{vSo}, v{vT+1}, 4, v{vSo}")
        a("s_lshl_b32 s43, s51, 6")
        a(f"v_add_u32 v{vSo}, s43, v{vSo}")
        a("s_lshl_b32 s47, s40, 15")
        for srd, p in ((32, 14), (36, 16)):
            a(f"s_add_u32 s{srd}, s{p}, s47")
            a(f"s_addc_u32 s{srd+1}, s{p+1}, 0")
            a(f"s_mov_b32 s{srd+2}, {SSZ}")
            a(f"s_mov_b32 s{srd+3}, 0x20000")
    def lds_setup():
        a(f"s_lshl_b32 s43, s50, 11"); a(f"s_add_u32 s43, s43, {LDS_SC}")
        a(f"v_lshlrev_b32 v{vSs}, 4, v{vL}")
        a(f"v_add_u32 v{FB}, s43, v{vSs}")
        a(f"v_lshlrev_b32 v{vSa}, 4, v{vT}")
        a(f"v_add_u32 v{vSa}, s43, v{vSa}")
        a(f"s_mul_i32 s43, s50, {NT*2048}"); a(f"s_add_u32 s43, s43, {LDS_S}")
        a(f"v_add_u32 v{vSs}, s43, v{vSs}")
        a("s_mov_b32 s44, 0xaaaaaaaa")
        a("s_mov_b32 s45, 0xaaaaaaaa")
    vSo = MM
    vQo, vZo = vT+5, vT+6
    step = I * 16384
    def pair(pi, e):
        for i in range(2):
            r = RB + 64*pi + 8*e + 4*i
            a(f"buffer_load_dwordx4 v[{r}:{r+3}], v{vAd}, {SRD}, 0 offen offset:{e*512+i*256} {ldf}")
    lbl = [0]
    def issue(j, kphase):
        if j % 8 == 0:
            if kphase:
                lbl[0] += 1
                a("s_add_u32 s57, s57, 1")
                a(f"s_cmp_eq_u32 s57, {NT}")
                a(f"s_cbranch_scc1 L_tov{lbl[0]}")
                a(f"v_add_u32 v{vAd}, {step}, v{vAd}")
                a(f"s_branch L_adv{lbl[0]}")
                a(f"L_tov{lbl[0]}:")
                a("s_mov_b32 s24, s28"); a("s_mov_b32 s25, s29")
                a(f"v_mov_b32 v{vAd}, v{vV0}")
                a(f"L_adv{lbl[0]}:")
            else:
                a(f"v_add_u32 v{vAd}, {step}, v{vAd}")
        pair((j // 8) % U, j % 8)
    QR, KSR, KZR = ACC, ACC + 4, ACC + 12
    SVR, SZR = ACC + 20, ACC + 24
    a("s_mov_b32 s57, 0")
    for j in range(early): pair(0, j)
    rest_of_setup()
    for i in range(2):
        a(f"global_load_dwordx2 v[{QR+2*i}:{QR+2*i+1}], v{vQo}, s[4:5] offset:{128*i}")
    for g in range(2):
        for i in range(2):
            a(f"global_load_dwordx2 v[{KSR+4*g+2*i}:{KSR+4*g+2*i+1}], v{vZo}, s[10:11] offset:{256*g+128*i}")
            a(f"global_load_dwordx2 v[{KZR+4*g+2*i}:{KZR+4*g+2*i+1}], v{vZo}, s[12:13] offset:{256*g+128*i}")
    a(f"buffer_load_dwordx4 v[{SVR}:{SVR+3}], v{vSo}, {SVS}, 0 offen")
    a(f"buffer_load_dwordx4 v[{SZR}:{SZR+3}], v{vSo}, {SVZ}, 0 offen")
    for j in range(early, d): issue(j, True)
    stamp()
    lds_setup()
    a(f"s_waitcnt vmcnt({2*(d-early)})")
    a(f"ds_write_b128 v{FB}, v[{SVR}:{SVR+3}]")
    a(f"ds_write_b128 v{FB}, v[{SZR}:{SZR+3}] offset:1024")
    a(f"v_lshrrev_b32 v{vT}, 4, v{vL}")
    a(f"v_and_b32 v{vT+1}, 3, v{vL}")
    a(f"v_bfe_u32 v{vT+2}, v{vL}, 2, 2")
    a(f"v_lshl_add_u32 v{AD0}, v{vT}, 3, v{vT+2}")
    a(f"v_lshlrev_b32 v{AD0}, 11, v{AD0}")
    a(f"v_lshl_add_u32 v{AD0}, v{vT+1}, 4, v{AD0}")
    a("s_lshl_b32 s43, s40, 16"); a("s_lshl_b32 s48, s41, 6"); a("s_add_u32 s43, s43, s48"); a("s_lshl_b32 s48, s50, 13"); a("s_add_u32 s43, s43, s48"); a(f"s_add_u32 s43, s43, {A2A_DATA}")
    a(f"v_add_u32 v{AD0}, s43, v{AD0}")
    a(f"v_lshlrev_b32 v{ASt}, 8, v{vT}")
    a("s_lshl_b32 s43, s40, 10"); a("s_lshl_b32 s48, s41, 3"); a("s_add_u32 s43, s43, s48"); a(f"s_add_u32 s43, s43, {A2A_STAT}")
    a(f"v_add_u32 v{ASt}, s43, v{ASt}")
    a(f"v_lshrrev_b32 v{APs}, 1, v{vL}")
    a(f"v_and_b32 v{vT+3}, 1, v{vL}")
    a(f"v_lshlrev_b32 v{APd}, 6, v{APs}")
    a(f"v_lshl_add_u32 v{APd}, v{vT+3}, 4, v{APd}")
    a("s_lshl_b32 s43, s40, 5"); a("s_add_u32 s43, s43, s41"); a("s_lshl_b32 s43, s43, 11"); a("s_lshl_b32 s48, s50, 5"); a("s_add_u32 s43, s43, s48"); a(f"s_add_u32 s43, s43, {A2A_DATA}")
    a(f"v_add_u32 v{APd}, s43, v{APd}")
    a("s_lshr_b32 s48, s41, 3"); a("s_lshl_b32 s49, s40, 2"); a("s_add_u32 s49, s49, s48")
    a("s_lshl_b32 s43, s49, 8"); a(f"s_add_u32 s43, s43, {A2A_STAT}")
    a(f"v_lshlrev_b32 v{APs}, 3, v{APs}")
    a(f"v_add_u32 v{APs}, s43, v{APs}")
    a("s_and_b32 s48, s41, 7"); a("s_lshl_b32 s48, s48, 5"); a("s_lshl_b32 s43, s49, 8"); a("s_add_u32 s43, s43, s48"); a("s_lshl_b32 s48, s50, 4"); a("s_add_u32 s43, s43, s48")
    a(f"v_lshlrev_b32 v{AOut}, 3, v{vL}")
    a(f"v_add_u32 v{AOut}, s43, v{AOut}")
    a(f"v_lshlrev_b32 v{AXo}, 4, v{vL}")
    a("s_lshl_b32 s43, s50, 10"); a(f"s_add_u32 s48, s43, {LDS_X}"); a("s_xor_b32 s43, s43, 1024"); a(f"s_add_u32 s43, s43, {LDS_X}")
    a(f"v_add_u32 v{AXi}, s43, v{AXo}")
    a(f"v_add_u32 v{AXo}, s48, v{AXo}")
    a(f"v_lshlrev_b32 v{AXs}, 4, v{vT+2}")
    a("s_lshl_b32 s43, s50, 3"); a(f"s_add_u32 s43, s43, {LDS_X + 2048}")
    a(f"v_add_u32 v{AXs}, s43, v{AXs}")
    a(f"v_lshlrev_b32 v{AD1}, 4, v{vT}")
    a(f"v_add_u32 v{AD1}, {LDS_X + 2048}, v{AD1}")
    a("s_getreg_b32 s53, hwreg(HW_REG_XCC_ID, 0, 4)")
    a("s_mul_i32 s54, s53, s53")
    a("s_lshl_b32 s54, s54, 18")
    a("s_lshl_b32 s53, s53, 8")
    a("s_add_u32 s53, s53, s54")
    a("s_add_u32 s53, s53, 1")
    a("s_lshl_b32 s54, s53, 5")
    a(f"s_mov_b32 s43, {SCALE_LOG2E}")
    def post(D, dst):
        a(f"v_cndmask_b32 v{vT}, v{D}, v{D+1}, s[44:45]")
        a(f"v_cndmask_b32 v{vT+1}, v{D+2}, v{D+3}, s[44:45]")
        a(f"v_add_f32_dpp v{vT}, v{vT+1}, v{vT} quad_perm:[2,3,0,1] row_mask:0xf bank_mask:0xf")
        a(f"v_add_f32_dpp v{dst}, v{vT}, v{vT} quad_perm:[1,0,3,2] row_mask:0xf bank_mask:0xf")
    for g in range(2):
        qb = (QB, QB1)[g]
        for k in range(4):
            lo, hi = T, T+1
            a(f"v_lshlrev_b32 v{lo}, 16, v{QR+k}")
            a(f"v_and_b32 v{hi}, 0xffff0000, v{QR+k}")
            a(f"v_lshlrev_b32 v{T+2}, 16, v{KSR+4*g+k}")
            a(f"v_and_b32 v{T+3}, 0xffff0000, v{KSR+4*g+k}")
            a(f"v_mul_f32 v{lo}, v{lo}, v{T+2}")
            a(f"v_mul_f32 v{hi}, v{hi}, v{T+3}")
            a(f"v_mul_f32 v{lo}, s43, v{lo}")
            a(f"v_mul_f32 v{hi}, s43, v{hi}")
            a(f"v_cvt_pk_bf16_f32 v{qb+k}, v{lo}, v{hi}")
        a(f"v_mfma_f32_16x16x32_bf16 v[{T+4+4*g}:{T+7+4*g}], v[{KZR+4*g}:{KZR+4*g+3}], v[{qb}:{qb+3}], 0")
    for g in range(2):
        post(T+4+4*g, (CC, CC1)[g])
    a(f"v_mov_b32 v{MM}, 0xff800000")
    a(f"v_mov_b32 v{LL}, 0")
    a(f"v_mov_b32 v{vChk}, 0")
    if accpro:
        for r in range(ACC, ACC+36): a(f"v_mov_b32 v{r}, 0")
    half_sw = (NT // 2) if not blocked else None
    if blocked:
        a("s_cmp_lt_u32 s41, 16")
        a("s_cbranch_scc1 L_g0")
        for k in range(4): a(f"v_mov_b32 v{QB+k}, v{QB1+k}")
        a(f"v_mov_b32 v{CC}, v{CC1}")
        a("L_g0:")
    a(f"v_mov_b32 v{CK}, v{CC}")
    a("s_mov_b32 s42, 0")
    full = a
    def filt(text):
        op = text.split()[0]
        if strip >= 1 and op == "v_cvt_f32_i32": return
        if strip >= 2 and op in ("v_cvt_pk_bf16_f32", "v_mfma_f32_16x16x32_bf16", "v_cndmask_b32", "v_add_f32_dpp"): return
        if strip >= 3 and op.startswith("v_") and op not in ("v_add_u32", "v_mov_b32", "v_subrev_u32"): return
        full(text)
    a = filt
    if align: a(f".p2align {align}")
    a("L_kloop:")
    if half_sw is not None:
        a(f"s_cmp_eq_u32 s42, {half_sw}")
        a("s_cbranch_scc0 L_nosw")
        for k in range(4): a(f"v_mov_b32 v{QB+k}, v{QB1+k}")
        a(f"v_mov_b32 v{CK}, v{CC1}")
        a("L_nosw:")
    for pi in range(U):
        for e in range(8):
            r = RB + 64*pi + 8*e
            ta, td, pd = TA[e&1], TD[e&1], TD[(e-1)&1]
            a(f"s_waitcnt vmcnt({2*(d-1)})")
            if first: issue(8*pi + e + d, True)
            for x in range(8): a(f"v_cvt_f32_i32 v{r+x}, v{r+x}")
            if first and kfill and e > 0:
                a(f"v_cndmask_b32 v{vT}, v{pd}, v{pd+1}, s[44:45]")
                a(f"v_cndmask_b32 v{vT+1}, v{pd+2}, v{pd+3}, s[44:45]")
                a(f"v_cvt_pk_bf16_f32 v{ta}, v{r}, v{r+1}")
                a(f"v_cvt_pk_bf16_f32 v{ta+1}, v{r+2}, v{r+3}")
                a(f"v_add_f32_dpp v{vT}, v{vT+1}, v{vT} quad_perm:[2,3,0,1] row_mask:0xf bank_mask:0xf")
                a(f"v_cvt_pk_bf16_f32 v{ta+2}, v{r+4}, v{r+5}")
                a(f"v_cvt_pk_bf16_f32 v{ta+3}, v{r+6}, v{r+7}")
                a(f"v_add_f32_dpp v{S+e-1}, v{vT}, v{vT} quad_perm:[1,0,3,2] row_mask:0xf bank_mask:0xf")
                if e >= 2: a(f"v_max_f32 v{vT+2}, v{vT+2}, v{S+e-2}")
                else: a(f"v_mov_b32 v{vT+2}, 0xff800000")
            else:
                if e > 0:
                    a(f"v_cndmask_b32 v{vT}, v{pd}, v{pd+1}, s[44:45]")
                    a(f"v_cndmask_b32 v{vT+1}, v{pd+2}, v{pd+3}, s[44:45]")
                a(f"v_cvt_pk_bf16_f32 v{ta}, v{r}, v{r+1}")
                a(f"v_cvt_pk_bf16_f32 v{ta+1}, v{r+2}, v{r+3}")
                if e > 0: a(f"v_add_f32_dpp v{vT}, v{vT+1}, v{vT} quad_perm:[2,3,0,1] row_mask:0xf bank_mask:0xf")
                a(f"v_cvt_pk_bf16_f32 v{ta+2}, v{r+4}, v{r+5}")
                a(f"v_cvt_pk_bf16_f32 v{ta+3}, v{r+6}, v{r+7}")
                if e > 0: a(f"v_add_f32_dpp v{S+e-1}, v{vT}, v{vT} quad_perm:[1,0,3,2] row_mask:0xf bank_mask:0xf")
            if not first: issue(8*pi + e + d, True)
            a(f"v_mfma_f32_16x16x32_bf16 v[{td}:{td+3}], v[{ta}:{ta+3}], v[{QB}:{QB+3}], 0")
        t0 = vT+2
        pd = TD[1]
        if first and kfill:
            a(f"ds_write_b128 v{vSs}, v[{S}:{S+3}]")
            a(f"v_max_f32 v{t0}, v{t0}, v{S+6}")
            a("s_nop 5")
        else:
            a(f"v_max3_f32 v{t0}, v{S}, v{S+1}, v{S+2}")
            a(f"ds_write_b128 v{vSs}, v[{S}:{S+3}]")
            a(f"v_max3_f32 v{t0}, v{t0}, v{S+3}, v{S+4}")
            a(f"v_max3_f32 v{t0}, v{t0}, v{S+5}, v{S+6}")
            a("s_nop 3")
        a(f"v_cndmask_b32 v{vT}, v{pd}, v{pd+1}, s[44:45]")
        a(f"v_cndmask_b32 v{vT+1}, v{pd+2}, v{pd+3}, s[44:45]")
        a(f"v_sub_f32 v{t0}, v{t0}, v{CK}")
        a(f"v_max_f32 v{MM}, v{MM}, v{t0}")
        a(f"v_add_f32_dpp v{vT}, v{vT+1}, v{vT} quad_perm:[2,3,0,1] row_mask:0xf bank_mask:0xf")
        a("s_nop 1")
        a(f"v_add_f32_dpp v{S+7}, v{vT}, v{vT} quad_perm:[1,0,3,2] row_mask:0xf bank_mask:0xf")
        a(f"v_sub_f32 v{t0}, v{S+7}, v{CK}")
        a(f"ds_write_b128 v{vSs}, v[{S+4}:{S+7}] offset:1024")
        a(f"v_max_f32 v{MM}, v{MM}, v{t0}")
        a(f"v_add_u32 v{vSs}, 2048, v{vSs}")
    a(f"s_add_u32 s42, s42, {U}")
    a(f"s_cmp_lt_u32 s42, {NT}")
    a("s_cbranch_scc1 L_kloop")
    stamp()
    a(f"v_subrev_u32 v{vSs}, {NT*2048}, v{vSs}")
    a(f"v_mov_b32 v{CK}, v{CC}")
    a(f"v_mov_b32 v{vT}, v{MM}")
    a(f"ds_read_b128 v[{S}:{S+3}], v{vSs}")
    a(f"ds_read_b128 v[{S+4}:{S+7}], v{vSs} offset:1024")
    a(f"v_permlane16_swap_b32 v{MM}, v{vT}")
    a(f"v_max_f32 v{MM}, v{MM}, v{vT}")
    a(f"ds_read_b128 v[{VS}:{VS+3}], v{vSa}")
    a(f"v_mov_b32 v{vT}, v{MM}")
    a(f"ds_read_b128 v[{VZ}:{VZ+3}], v{vSa} offset:1024")
    a(f"v_add_u32 v{vSs}, 2048, v{vSs}")
    a(f"v_permlane32_swap_b32 v{MM}, v{vT}")
    a(f"v_max_f32 v{MM}, v{MM}, v{vT}")
    if not accpro:
        for r in range(ACC, ACC+36): a(f"v_mov_b32 v{r}, 0")
    a("s_mov_b32 s42, 0")
    if align: a(f".p2align {align}")
    a("L_vloop:")
    for pi in range(U):
        if pi == 0:
            a(f"s_cmp_eq_u32 s42, {max(NT-max(chk,U), 0) // U * U}")
            a("s_cbranch_scc0 L_nochk")
            a(f"s_lshl_b32 s43, s40, 5")
            a(f"v_mov_b32 v{vT}, s43")
            if not fspin: a(f"global_load_dword v{vChk}, v{vT}, s[20:21] sc1")
            a("L_nochk:")
        mc = FB
        a(f"v_add_f32 v{mc}, v{MM}, v{CK}")
        a("s_waitcnt lgkmcnt(0)")
        for k in range(8): a(f"v_sub_f32 v{S+k}, v{S+k}, v{mc}")
        for k in range(4):
            a(f"v_exp_f32 v{S+2*k}, v{S+2*k}")
            a(f"v_lshlrev_b32 v{T+2*k}, 16, v{VS+k}")
            a(f"v_exp_f32 v{S+2*k+1}, v{S+2*k+1}")
            a(f"v_and_b32 v{T+2*k+1}, 0xffff0000, v{VS+k}")
        for k in range(4):
            a(f"v_mul_f32 v{T+2*k}, v{T+2*k}, v{S+2*k}")
            a(f"v_mul_f32 v{T+2*k+1}, v{T+2*k+1}, v{S+2*k+1}")
            a(f"v_add_f32 v{LL}, v{LL}, v{S+2*k}")
            a(f"v_cvt_pk_bf16_f32 v{W+k}, v{T+2*k}, v{T+2*k+1}")
            a(f"v_add_f32 v{LL}, v{LL}, v{S+2*k+1}")
        a(f"v_add_u32 v{vSa}, 64, v{vSa}")
        a(f"ds_read_b128 v[{S}:{S+3}], v{vSs}")
        a(f"v_mfma_f32_16x16x32_bf16 v[{ACZ}:{ACZ+3}], v[{W}:{W+3}], v[{VZ}:{VZ+3}], v[{ACZ}:{ACZ+3}]")
        a(f"ds_read_b128 v[{S+4}:{S+7}], v{vSs} offset:1024")
        a(f"ds_read_b128 v[{VS}:{VS+3}], v{vSa}")
        for k in range(4):
            r0 = RB + 64*pi + 8*(2*k)
            r1 = r0 + 8
            a(f"s_waitcnt vmcnt({2*(d-2)})")
            last = skipl and first and pi == U - 1 and k == 3
            if last:
                a(f"s_cmp_eq_u32 s42, {NT - U}")
                a("s_cbranch_scc1 L_skipl")
            if first: issue(8*pi + 2*k + d, False); issue(8*pi + 2*k + 1 + d, False)
            if last: a("L_skipl:")
            for x in range(8):
                a(f"v_cvt_f32_i32 v{r0+x}, v{r0+x}")
                a(f"v_cvt_f32_i32 v{r1+x}, v{r1+x}")
            if k == 0:
                a(f"ds_read_b128 v[{VZ}:{VZ+3}], v{vSa} offset:1024")
                a(f"v_add_u32 v{vSs}, 2048, v{vSs}")
            for half in range(2):
                for c in range(4):
                    a(f"v_cvt_pk_bf16_f32 v{T+16*half+4*c+k}, v{r0+4*half+c}, v{r1+4*half+c}")
            if not first: issue(8*pi + 2*k + d, False); issue(8*pi + 2*k + 1 + d, False)
        for half in range(2):
            for c in range(4):
                dd = ACC + 16*half + 4*c
                a(f"v_mfma_f32_16x16x32_bf16 v[{dd}:{dd+3}], v[{W}:{W+3}], v[{T+16*half+4*c}:{T+16*half+4*c+3}], v[{dd}:{dd+3}]")
        if half_sw is not None and pi == U - 1:
            a(f"s_cmp_eq_u32 s42, {half_sw - U}")
            a("s_cbranch_scc0 L_nosw2")
            a(f"v_mov_b32 v{CK}, v{CC1}")
            a("L_nosw2:")
    a(f"s_add_u32 s42, s42, {U}")
    a(f"s_cmp_lt_u32 s42, {NT}")
    a("s_cbranch_scc1 L_vloop")
    stamp()
    a = full
    if cut == "notail": a("s_branch L_send")
    KEEP, GIVE, RECV, STQ, SP = S, S + 4, T, T + 4, W
    a(f"v_mov_b32 v{vT}, v{LL}")
    a(f"v_readfirstlane_b32 s48, v{vChk}")
    a(f"v_permlane16_swap_b32 v{LL}, v{vT}")
    a(f"v_add_f32 v{LL}, v{LL}, v{vT}")
    a(f"v_mov_b32 v{vT}, v{LL}")
    a("s_cmp_eq_u32 s50, 0")
    a("s_waitcnt lgkmcnt(0)")
    a(f"v_permlane32_swap_b32 v{LL}, v{vT}")
    a(f"v_add_f32 v{SP+1}, v{LL}, v{vT}")
    a(f"v_mov_b32 v{SP}, v{MM}")
    a("s_cbranch_scc1 L_w0")
    for c in range(4): a(f"v_sub_f32 v{GIVE+c}, v{ACC+4*c}, v{ACZ}")
    for c in range(4): a(f"v_sub_f32 v{KEEP+c}, v{ACC+16+4*c}, v{ACZ}")
    a("s_branch L_wx")
    a("L_w0:")
    for c in range(4): a(f"v_sub_f32 v{GIVE+c}, v{ACC+16+4*c}, v{ACZ}")
    for c in range(4): a(f"v_sub_f32 v{KEEP+c}, v{ACC+4*c}, v{ACZ}")
    a("L_wx:")
    a(f"ds_write_b128 v{AXo}, v[{GIVE}:{GIVE+3}]")
    a("s_mov_b64 exec, 0x1111")
    a(f"ds_write_b64 v{AXs}, v[{SP}:{SP+1}]")
    a("s_mov_b64 exec, -1")
    a("s_and_b32 s55, s48, 0xff")
    a("s_waitcnt lgkmcnt(0)")
    a("s_barrier")
    a(f"ds_read_b128 v[{STQ}:{STQ+3}], v{AD1}")
    a(f"ds_read_b128 v[{RECV}:{RECV+3}], v{AXi}")
    a("s_mov_b32 s43, 0xfffffffe")
    a("s_waitcnt lgkmcnt(1)")
    a(f"v_max_f32 v{vT}, v{STQ}, v{STQ+2}")
    a(f"v_sub_f32 v{STQ}, v{STQ}, v{vT}")
    a(f"v_sub_f32 v{STQ+2}, v{STQ+2}, v{vT}")
    a(f"v_exp_f32 v{STQ}, v{STQ}")
    a(f"v_exp_f32 v{STQ+2}, v{STQ+2}")
    a(f"v_min_u32 v{SP}, s43, v{vT}")
    a("s_cmp_eq_u32 s50, 0")
    a(f"v_mul_f32 v{vT+1}, v{STQ}, v{STQ+1}")
    a(f"v_fmac_f32 v{vT+1}, v{STQ+2}, v{STQ+3}")
    a("s_cbranch_scc1 L_f0")
    a(f"v_swap_b32 v{STQ}, v{STQ+2}")
    a("L_f0:")
    a(f"v_min_u32 v{SP+1}, s43, v{vT+1}")
    a("s_waitcnt lgkmcnt(0)")
    for c in range(4): a(f"v_mul_f32 v{KEEP+c}, v{KEEP+c}, v{STQ}")
    for c in range(4): a(f"v_fmac_f32 v{KEEP+c}, v{RECV+c}, v{STQ+2}")
    for c in range(4): a(f"v_min_u32 v{KEEP+c}, s43, v{KEEP+c}")
    a("s_cmp_ge_u32 s55, 32")
    a("s_cbranch_scc1 L_started")
    a("s_mov_b32 s52, 0")
    a("s_lshl_b32 s43, s40, 5")
    a(f"v_mov_b32 v{vT}, s43")
    a("L_spin0:")
    a(f"global_load_dword v{vChk}, v{vT}, s[20:21] sc1")
    a("s_add_u32 s52, s52, 1")
    a("s_waitcnt vmcnt(0)")
    a(f"v_readfirstlane_b32 s48, v{vChk}")
    a(f"s_cmp_gt_u32 s52, {maxspin}")
    a("s_cbranch_scc1 L_started")
    a("s_and_b32 s55, s48, 0xff")
    a("s_cmp_ge_u32 s55, 32")
    a("s_cbranch_scc0 L_spin0")
    a("L_started:")
    if force == "slow": a("s_branch L_pslow")
    a("s_cmp_eq_u32 s48, s54")
    a("s_cbranch_scc0 L_pslow")
    a(f"global_store_dwordx4 v{AD0}, v[{KEEP}:{KEEP+3}], s[22:23]")
    a("s_cmp_eq_u32 s50, 0")
    a("s_cbranch_scc0 L_pdone")
    a("s_mov_b32 exec_lo, 0x00010001"); a("s_mov_b32 exec_hi, 0x00010001")
    a(f"global_store_dwordx2 v{ASt}, v[{SP}:{SP+1}], s[22:23]")
    a("s_branch L_pdone")
    a("L_pslow:")
    a(f"global_store_dwordx4 v{AD0}, v[{KEEP}:{KEEP+3}], s[22:23] sc1")
    a("s_cmp_eq_u32 s50, 0")
    a("s_cbranch_scc0 L_pdone")
    a("s_mov_b32 exec_lo, 0x00010001"); a("s_mov_b32 exec_hi, 0x00010001")
    a(f"global_store_dwordx2 v{ASt}, v[{SP}:{SP+1}], s[22:23] sc1")
    a("L_pdone:")
    a("s_mov_b64 exec, -1")
    stamp()
    if cut == "pub": a("s_branch L_send")
    PD, PS = T + 8, T + 12
    mx, t, f0, ls = vT+2, vT+1, vT+3, vT+5
    a("s_mov_b32 s52, 0")
    a("L_poll:")
    a(f"global_load_dwordx2 v[{PS}:{PS+1}], v{APs}, s[22:23] sc1")
    a(f"global_load_dwordx4 v[{PD}:{PD+3}], v{APd}, s[22:23] sc1")
    a("s_add_u32 s52, s52, 1")
    a(f"s_cmp_gt_u32 s52, {maxspin}")
    a("s_cbranch_scc1 L_polled0")
    a("s_waitcnt vmcnt(1)")
    a(f"v_max_u32 v{vT}, v{PS}, v{PS+1}")
    a(f"v_max_f32_dpp v{mx}, v{PS}, v{PS} row_ror:2 row_mask:0xf bank_mask:0xf")
    a("s_waitcnt vmcnt(0)")
    a(f"v_max3_u32 v{vT}, v{vT}, v{PD}, v{PD+1}")
    a(f"v_max_f32_dpp v{mx}, v{mx}, v{mx} row_ror:4 row_mask:0xf bank_mask:0xf")
    a(f"v_max3_u32 v{vT}, v{vT}, v{PD+2}, v{PD+3}")
    a(f"v_cmp_eq_u32 vcc, -1, v{vT}")
    a(f"v_max_f32_dpp v{mx}, v{mx}, v{mx} row_ror:8 row_mask:0xf bank_mask:0xf")
    a("s_nop 3")
    a("s_cbranch_vccnz L_poll")
    a("L_polled0:")
    a("s_waitcnt vmcnt(0)")
    stamp()
    X = T + 16
    a(f"v_mov_b32 v{t}, v{mx}")
    a(f"v_permlane16_swap_b32 v{mx}, v{t}")
    a(f"v_max_f32 v{mx}, v{mx}, v{t}")
    a(f"v_mov_b32 v{t}, v{mx}")
    a(f"v_permlane32_swap_b32 v{mx}, v{t}")
    a(f"v_max_f32 v{mx}, v{mx}, v{t}")
    a(f"v_sub_f32 v{f0}, v{PS}, v{mx}")
    a(f"v_exp_f32 v{f0}, v{f0}")
    R = [PS+1, PD, PD+1, PD+2, PD+3]
    for x in R: a(f"v_mul_f32 v{x}, v{x}, v{f0}")
    for r in (2, 4, 8):
        for x in R: a(f"v_add_f32_dpp v{x}, v{x}, v{x} row_ror:{r} row_mask:0xf bank_mask:0xf")
    for sw in ("v_permlane16_swap_b32", "v_permlane32_swap_b32"):
        for k, x in enumerate(R): a(f"v_mov_b32 v{X+k}, v{x}")
        for k, x in enumerate(R): a(f"{sw} v{x}, v{X+k}")
        for k, x in enumerate(R): a(f"v_add_f32 v{x}, v{x}, v{X+k}")
    a(f"v_rcp_f32 v{ls}, v{PS+1}")
    a("s_mov_b64 exec, 3")
    for c in range(4): a(f"v_mul_f32 v{PD+c}, v{PD+c}, v{ls}")
    a(f"v_cvt_pk_bf16_f32 v{PD}, v{PD}, v{PD+1}")
    a(f"v_cvt_pk_bf16_f32 v{PD+1}, v{PD+2}, v{PD+3}")
    a(f"global_store_dwordx2 v{AOut}, v[{PD}:{PD+1}], s[18:19] {outf}")
    stamp()
    a("L_send:")
    nstream = nst[0]
    stamp_out(nstream)
    a("s_endpgm")
    nst[0] = 1
    a("L_helper:")
    vPd, vSt, MK = 20, 21, 24
    a("s_lshl_b32 s43, s40, 5"); a("s_add_u32 s43, s43, s41"); a("s_lshl_b32 s43, s43, 11"); a(f"s_add_u32 s43, s43, {A2A_DATA}")
    a(f"v_lshlrev_b32 v{vPd}, 4, v{vL}")
    a(f"v_add_u32 v{vPd}, s43, v{vPd}")
    a(f"v_lshlrev_b32 v{vSt}, 8, v{vT}")
    a("s_lshl_b32 s43, s40, 10"); a("s_lshl_b32 s48, s41, 3"); a("s_add_u32 s43, s43, s48"); a(f"s_add_u32 s43, s43, {A2A_STAT}")
    a(f"v_add_u32 v{vSt}, s43, v{vSt}")
    for k in range(4): a(f"v_mov_b32 v{MK+k}, -1")
    a("s_getreg_b32 s53, hwreg(HW_REG_XCC_ID, 0, 4)")
    a("s_mul_i32 s54, s53, s53")
    a("s_lshl_b32 s54, s54, 18")
    a("s_lshl_b32 s53, s53, 8")
    a("s_add_u32 s53, s53, s54")
    a("s_add_u32 s53, s53, 1")
    a("s_lshl_b32 s43, s40, 5")
    a(f"v_mov_b32 v28, s43")
    a(f"v_mov_b32 v29, s53")
    a("s_waitcnt lgkmcnt(0)")
    stamp()
    if nohelp: a("s_branch L_hend")
    for k in range(dly):
        a("v_mov_b32 v30, 0"); a("global_load_dword v31, v30, s[4:5] sc1"); a("s_waitcnt vmcnt(0)")
    for k in range(2):
        if mkonly != "stat": a(f"global_store_dwordx4 v{vPd}, v[{MK}:{MK+3}], s[22:23] offset:{1024*k} {mkf}")
    a("s_mov_b32 exec_lo, 0x00010001"); a("s_mov_b32 exec_hi, 0x00010001")
    a(f"global_store_dwordx2 v{vSt}, v[{MK}:{MK+1}], s[22:23] sc1")
    a("s_waitcnt vmcnt(0)")
    a("s_mov_b64 exec, 1")
    a("global_atomic_add v28, v29, s[20:21] sc1")
    stamp()
    a("L_hend:")
    stamp_out(nst[0])
    a("L_end:")
    a("s_endpgm")
    body = a.finalize()
    txt = HEAD + f"; @launch grid=(256,1,1) block=({64*(NS+1)},1,1) lds={LDS}\n"
    txt += f'.amdgcn_target "amdgcn-amd-amdhsa--gfx950"\n.text\n.globl {KN}\n.p2align 8\n.type {KN},@function\n{KN}:\n' + body
    txt += '.section .rodata,"a"\n.p2align 6\n' + kd(KN, max(NV, 120))
    open(name + ".s", "w").write(txt)
    build(name + ".s")
    if out: print(name, "pads:", a.pads, "stamps:", nstream, nst[0], "vgprs", NV, "lds", LDS)
if __name__ == "__main__":
    V = eval(open(sys.argv[1]).read())
    names = []
    for nm, v in V:
        gen(nm, **v); names.append(nm)
    print(" ".join(n + ".co" for n in names))
```

```python
import sys, struct, math
from asmlib import Asm
from build import build, KN
from gen_v1 import kd, HEAD, SCALE_LOG2E
A2A_DATA = 0x200000
A2A_STAT = 0x400000

def gen(name, NS=2, d=8, ldf="nt", xmap="xcd", stamps=False, oob=False, maxspin=1<<18, force=None, out=True, chk=4,
        nohelp=False, poll="full", I=None, inbox=False, mkf="sc1", cut=None, outf="", strip=0, first=True, early=2, accpro=True, align=None, kfill=True, fspin=False, jb=False, skipl=False, prio=0, dly=0, mkonly=None, rs=False, hoist=False):
    a = Asm()
    NT = 16 // NS
    I = I or 32 * NS
    blocked = (I == NS)
    assert NS == 2
    P = 32
    U = 2 if (d > 8 or (first and d > 6)) else 1
    assert 2 <= d <= 16 and NT % U == 0 and (NT // 2) % U == 0
    assert not first or d <= 8 * U - 2
    nst = [0]
    def stamp():
        if stamps:
            i = nst[0]; nst[0] += 1
            a(f"s_memrealtime s[{64+2*i}:{65+2*i}]")
    def stamp_out(n):
        if stamps:
            a("s_waitcnt vmcnt(0) lgkmcnt(0)")
            a("s_mov_b64 exec, 1")
            a(f"s_mul_i32 s60, s2, {NS+1}")
            a("s_add_u32 s60, s60, s50")
            a("s_lshl_b32 s60, s60, 6")
            a("s_add_u32 s60, s60, 0x100000")
            a("v_mov_b32 v10, s60")
            a("s_getreg_b32 s61, hwreg(HW_REG_XCC_ID, 0, 16)")
            a("v_mov_b32 v11, s61")
            a("global_store_dword v10, v11, s[22:23] offset:60")
            a("s_getreg_b32 s61, hwreg(HW_REG_HW_ID)")
            a("v_mov_b32 v11, s61")
            a("global_store_dword v10, v11, s[22:23] offset:56")
            a("s_nop 1")
            for i in range(n):
                a(f"v_mov_b32 v11, s{64+2*i}")
                a(f"global_store_dword v10, v11, s[22:23] offset:{4*i}")
                a("s_nop 1")
    vL, vAd, vV0, vSa, vT = 1, 2, 3, 4, 5
    MM, LL, CC, CC1, vSs, FB, vChk, CK = 12, 13, 14, 15, 16, 17, 18, 19
    QB, QB1 = 20, 24
    VS, VZ = 28, 32
    S, W = 36, 44
    T = 48
    ACC, ACZ = 80, 112
    AD0, AD1, ASt, APd, APs, AOut, AXo, AXi = 116, 117, 118, 119, 120, 121, 122, 123
    AXs = 11
    RB = 124
    NV = RB + 64 * U
    TA = [T, T+4]; TD = [T+8, T+12]
    SRD, SVS, SVZ = "s[24:27]", "s[32:35]", "s[36:39]"
    LDS_SC = 0
    LDS_S = LDS_SC + NS * 2048
    LDS_X = LDS_S + NS * NT * 2048 + 2048
    LDS = LDS_X + 2048 + 64
    a("s_cmp_ge_u32 s2, 256")
    a("s_cbranch_scc1 L_end")
    stamp()
    a("s_load_dwordx16 s[4:19], s[0:1], 0")
    a("s_load_dwordx4 s[20:23], s[0:1], 64")
    if xmap == "xcd":
        a("s_and_b32 s40, s2, 7"); a("s_lshr_b32 s41, s2, 3")
    else:
        a("s_lshr_b32 s40, s2, 5"); a("s_and_b32 s41, s2, 31")
    a(f"v_lshrrev_b32 v{vT}, 6, v0")
    a(f"v_and_b32 v{vL}, 63, v0")
    a(f"v_readfirstlane_b32 s50, v{vT}")
    a(f"v_lshrrev_b32 v{vT}, 4, v{vL}")
    a(f"v_and_b32 v{vT+1}, 3, v{vL}")
    a(f"v_bfe_u32 v{vT+2}, v{vL}, 2, 2")
    a(f"s_cmp_eq_u32 s50, {NS}")
    a("s_cbranch_scc1 L_helper")
    if prio: a(f"s_setprio {prio}")
    a(f"v_lshl_add_u32 v{vT+4}, v{vT}, 2, v{vT+1}")
    a(f"v_lshlrev_b32 v{vAd}, 4, v{vT+4}")
    a(f"v_lshl_add_u32 v{vAd}, v{vT+2}, 12, v{vAd}")
    if blocked:
        a(f"s_lshl_b32 s51, s41, 4"); a("s_add_u32 s51, s51, s50")
    else:
        if jb: a(f"s_lshl_b32 s51, s50, 5"); a("s_add_u32 s51, s51, s41")
        else: a(f"s_lshl_b32 s51, s41, 1"); a("s_add_u32 s51, s51, s50")
    a("s_lshl_b32 s43, s51, 14")
    a(f"v_add_u32 v{vAd}, s43, v{vAd}")
    a("s_lshl_b32 s46, s40, 23")
    KSZ, SSZ = 1 << 23, 1 << 15
    if oob: a("s_mov_b32 s26, 0")
    elif blocked: a("s_add_u32 s26, s41, 1"); a("s_lshl_b32 s26, s26, 18")
    else: a(f"s_mov_b32 s26, {KSZ}")
    a("s_mov_b32 s27, 0x20000")
    a("s_waitcnt lgkmcnt(0)")
    stamp()
    a("s_add_u32 s24, s6, s46"); a("s_addc_u32 s25, s7, 0")
    def rest_of_setup():
        a(f"v_and_b32 v{vT+3}, 15, v{vL}")
        a(f"v_lshlrev_b32 v{vV0}, 4, v{vT+3}")
        a(f"v_lshl_add_u32 v{vV0}, v{vT}, 12, v{vV0}")
        a(f"v_add_u32 v{vV0}, s43, v{vV0}")
        a("s_add_u32 s28, s8, s46"); a("s_addc_u32 s29, s9, 0")
        a(f"v_lshlrev_b32 v{vZo}, 3, v{vT+4}")
        a(f"v_lshl_add_u32 v{vQo}, v{vT+2}, 8, v{vZo}")
        a("s_lshl_b32 s43, s40, 10")
        a(f"v_add_u32 v{vQo}, s43, v{vQo}")
        a("s_lshl_b32 s43, s40, 9")
        a(f"v_add_u32 v{vZo}, s43, v{vZo}")
        a(f"v_lshrrev_b32 v{vSo}, 2, v{vL}")
        a(f"v_mul_u32_u24 v{vSo}, {I*64}, v{vSo}")
        a(f"v_lshl_add_u32 v{vSo}, v{vT+1}, 4, v{vSo}")
        a("s_lshl_b32 s43, s51, 6")
        a(f"v_add_u32 v{vSo}, s43, v{vSo}")
        a("s_lshl_b32 s47, s40, 15")
        for srd, p in ((32, 14), (36, 16)):
            a(f"s_add_u32 s{srd}, s{p}, s47")
            a(f"s_addc_u32 s{srd+1}, s{p+1}, 0")
            a(f"s_mov_b32 s{srd+2}, {SSZ}")
            a(f"s_mov_b32 s{srd+3}, 0x20000")
    def lds_setup():
        a(f"s_lshl_b32 s43, s50, 11"); a(f"s_add_u32 s43, s43, {LDS_SC}")
        a(f"v_lshlrev_b32 v{vSs}, 4, v{vL}")
        a(f"v_add_u32 v{FB}, s43, v{vSs}")
        a(f"v_lshlrev_b32 v{vSa}, 4, v{vT}")
        a(f"v_add_u32 v{vSa}, s43, v{vSa}")
        a(f"s_mul_i32 s43, s50, {NT*2048}"); a(f"s_add_u32 s43, s43, {LDS_S}")
        a(f"v_add_u32 v{vSs}, s43, v{vSs}")
        a("s_mov_b32 s44, 0xaaaaaaaa")
        a("s_mov_b32 s45, 0xaaaaaaaa")
    vSo = MM
    vQo, vZo = vT+5, vT+6
    step = I * 16384
    def pair(pi, e):
        for i in range(2):
            r = RB + 64*pi + 8*e + 4*i
            a(f"buffer_load_dwordx4 v[{r}:{r+3}], v{vAd}, {SRD}, 0 offen offset:{e*512+i*256} {ldf}")
    lbl = [0]
    def issue(j, kphase):
        if j % 8 == 0:
            if kphase:
                lbl[0] += 1
                a("s_add_u32 s57, s57, 1")
                a(f"s_cmp_eq_u32 s57, {NT}")
                a(f"s_cbranch_scc1 L_tov{lbl[0]}")
                a(f"v_add_u32 v{vAd}, {step}, v{vAd}")
                a(f"s_branch L_adv{lbl[0]}")
                a(f"L_tov{lbl[0]}:")
                a("s_mov_b32 s24, s28"); a("s_mov_b32 s25, s29")
                a(f"v_mov_b32 v{vAd}, v{vV0}")
                a(f"L_adv{lbl[0]}:")
            else:
                a(f"v_add_u32 v{vAd}, {step}, v{vAd}")
        pair((j // 8) % U, j % 8)
    QR, KSR, KZR = ACC, ACC + 4, ACC + 12
    SVR, SZR = ACC + 20, ACC + 24
    if hoist:
        assert U == 2 and d <= 12
        QR, KSR, KZR, SVR, SZR = RB + 96, RB + 100, RB + 108, RB + 116, RB + 120
    a("s_mov_b32 s57, 0")
    for j in range(early): pair(0, j)
    rest_of_setup()
    for i in range(2):
        a(f"global_load_dwordx2 v[{QR+2*i}:{QR+2*i+1}], v{vQo}, s[4:5] offset:{128*i}")
    for g in range(2):
        for i in range(2):
            a(f"global_load_dwordx2 v[{KSR+4*g+2*i}:{KSR+4*g+2*i+1}], v{vZo}, s[10:11] offset:{256*g+128*i}")
            a(f"global_load_dwordx2 v[{KZR+4*g+2*i}:{KZR+4*g+2*i+1}], v{vZo}, s[12:13] offset:{256*g+128*i}")
    a(f"buffer_load_dwordx4 v[{SVR}:{SVR+3}], v{vSo}, {SVS}, 0 offen")
    a(f"buffer_load_dwordx4 v[{SZR}:{SZR+3}], v{vSo}, {SVZ}, 0 offen")
    for j in range(early, d): issue(j, True)
    stamp()
    lds_setup()
    def handoff_setup():
        a(f"v_lshrrev_b32 v{vT}, 4, v{vL}")
        a(f"v_and_b32 v{vT+1}, 3, v{vL}")
        a(f"v_bfe_u32 v{vT+2}, v{vL}, 2, 2")
        a(f"v_lshl_add_u32 v{AD0}, v{vT}, 3, v{vT+2}")
        a(f"v_lshlrev_b32 v{AD0}, 11, v{AD0}")
        a(f"v_lshl_add_u32 v{AD0}, v{vT+1}, 4, v{AD0}")
        a("s_lshl_b32 s43, s40, 16"); a("s_lshl_b32 s48, s41, 6"); a("s_add_u32 s43, s43, s48"); a("s_lshl_b32 s48, s50, 13"); a("s_add_u32 s43, s43, s48"); a(f"s_add_u32 s43, s43, {A2A_DATA}")
        a(f"v_add_u32 v{AD0}, s43, v{AD0}")
        a(f"v_lshlrev_b32 v{ASt}, 8, v{vT}")
        a("s_lshl_b32 s43, s40, 10"); a("s_lshl_b32 s48, s41, 3"); a("s_add_u32 s43, s43, s48"); a(f"s_add_u32 s43, s43, {A2A_STAT}")
        a(f"v_add_u32 v{ASt}, s43, v{ASt}")
        a(f"v_lshrrev_b32 v{APs}, 1, v{vL}")
        a(f"v_and_b32 v{vT+3}, 1, v{vL}")
        a(f"v_lshlrev_b32 v{APd}, 6, v{APs}")
        a(f"v_lshl_add_u32 v{APd}, v{vT+3}, 4, v{APd}")
        a("s_lshl_b32 s43, s40, 5"); a("s_add_u32 s43, s43, s41"); a("s_lshl_b32 s43, s43, 11"); a("s_lshl_b32 s48, s50, 5"); a("s_add_u32 s43, s43, s48"); a(f"s_add_u32 s43, s43, {A2A_DATA}")
        a(f"v_add_u32 v{APd}, s43, v{APd}")
        a("s_lshr_b32 s48, s41, 3"); a("s_lshl_b32 s49, s40, 2"); a("s_add_u32 s49, s49, s48")
        a("s_lshl_b32 s43, s49, 8"); a(f"s_add_u32 s43, s43, {A2A_STAT}")
        a(f"v_lshlrev_b32 v{APs}, 3, v{APs}")
        a(f"v_add_u32 v{APs}, s43, v{APs}")
        a("s_and_b32 s48, s41, 7"); a("s_lshl_b32 s48, s48, 5"); a("s_lshl_b32 s43, s49, 8"); a("s_add_u32 s43, s43, s48"); a("s_lshl_b32 s48, s50, 4"); a("s_add_u32 s43, s43, s48")
        if rs:
            a(f"v_and_b32 v{AOut}, 1, v{vL}")
            a(f"v_lshlrev_b32 v{AOut}, 3, v{AOut}")
            a(f"v_lshl_add_u32 v{AOut}, v{vT}, 1, v{AOut}")
        else:
            a(f"v_lshlrev_b32 v{AOut}, 3, v{vL}")
        a(f"v_add_u32 v{AOut}, s43, v{AOut}")
        a(f"v_lshlrev_b32 v{AXo}, 4, v{vL}")
        a("s_lshl_b32 s43, s50, 10"); a(f"s_add_u32 s48, s43, {LDS_X}"); a("s_xor_b32 s43, s43, 1024"); a(f"s_add_u32 s43, s43, {LDS_X}")
        a(f"v_add_u32 v{AXi}, s43, v{AXo}")
        a(f"v_add_u32 v{AXo}, s48, v{AXo}")
        a(f"v_lshlrev_b32 v{AXs}, 4, v{vT+2}")
        a("s_lshl_b32 s43, s50, 3"); a(f"s_add_u32 s43, s43, {LDS_X + 2048}")
        a(f"v_add_u32 v{AXs}, s43, v{AXs}")
        a(f"v_lshlrev_b32 v{AD1}, 4, v{vT}")
        a(f"v_add_u32 v{AD1}, {LDS_X + 2048}, v{AD1}")
        a("s_getreg_b32 s53, hwreg(HW_REG_XCC_ID, 0, 4)")
        a("s_mul_i32 s54, s53, s53")
        a("s_lshl_b32 s54, s54, 18")
        a("s_lshl_b32 s53, s53, 8")
        a("s_add_u32 s53, s53, s54")
        a("s_add_u32 s53, s53, 1")
        a("s_lshl_b32 s54, s53, 5")
    def state_init():
        a(f"v_mov_b32 v{MM}, 0xff800000")
        a(f"v_mov_b32 v{LL}, 0")
        a(f"v_mov_b32 v{vChk}, 0")
        if accpro:
            for r in range(ACC, ACC+36): a(f"v_mov_b32 v{r}, 0")
    if hoist:
        handoff_setup(); state_init()
    a(f"s_waitcnt vmcnt({2*(d-early)})")
    a(f"ds_write_b128 v{FB}, v[{SVR}:{SVR+3}]")
    a(f"ds_write_b128 v{FB}, v[{SZR}:{SZR+3}] offset:1024")
    if not hoist: handoff_setup()
    a(f"s_mov_b32 s43, {SCALE_LOG2E}")
    def post(D, dst):
        a(f"v_cndmask_b32 v{vT}, v{D}, v{D+1}, s[44:45]")
        a(f"v_cndmask_b32 v{vT+1}, v{D+2}, v{D+3}, s[44:45]")
        a(f"v_add_f32_dpp v{vT}, v{vT+1}, v{vT} quad_perm:[2,3,0,1] row_mask:0xf bank_mask:0xf")
        a(f"v_add_f32_dpp v{dst}, v{vT}, v{vT} quad_perm:[1,0,3,2] row_mask:0xf bank_mask:0xf")
    if hoist:
        for k in range(4):
            lo, hi = T, T+1
            a(f"v_lshlrev_b32 v{lo}, 16, v{QR+k}")
            a(f"v_and_b32 v{hi}, 0xffff0000, v{QR+k}")
            a(f"v_lshlrev_b32 v{T+2}, 16, v{KSR+k}")
            a(f"v_and_b32 v{T+3}, 0xffff0000, v{KSR+k}")
            a(f"v_mul_f32 v{lo}, s43, v{lo}")
            a(f"v_mul_f32 v{hi}, s43, v{hi}")
            a(f"v_lshlrev_b32 v{T+12}, 16, v{KSR+4+k}")
            a(f"v_and_b32 v{T+13}, 0xffff0000, v{KSR+4+k}")
            a(f"v_mul_f32 v{T+2}, v{lo}, v{T+2}")
            a(f"v_mul_f32 v{T+3}, v{hi}, v{T+3}")
            a(f"v_mul_f32 v{T+12}, v{lo}, v{T+12}")
            a(f"v_mul_f32 v{T+13}, v{hi}, v{T+13}")
            a(f"v_cvt_pk_bf16_f32 v{QB+k}, v{T+2}, v{T+3}")
            a(f"v_cvt_pk_bf16_f32 v{QB1+k}, v{T+12}, v{T+13}")
        for g in range(2):
            qb = (QB, QB1)[g]
            a(f"v_mfma_f32_16x16x32_bf16 v[{T+4+4*g}:{T+7+4*g}], v[{KZR+4*g}:{KZR+4*g+3}], v[{qb}:{qb+3}], 0")
    else:
        for g in range(2):
            qb = (QB, QB1)[g]
            for k in range(4):
                lo, hi = T, T+1
                a(f"v_lshlrev_b32 v{lo}, 16, v{QR+k}")
                a(f"v_and_b32 v{hi}, 0xffff0000, v{QR+k}")
                a(f"v_lshlrev_b32 v{T+2}, 16, v{KSR+4*g+k}")
                a(f"v_and_b32 v{T+3}, 0xffff0000, v{KSR+4*g+k}")
                a(f"v_mul_f32 v{lo}, v{lo}, v{T+2}")
                a(f"v_mul_f32 v{hi}, v{hi}, v{T+3}")
                a(f"v_mul_f32 v{lo}, s43, v{lo}")
                a(f"v_mul_f32 v{hi}, s43, v{hi}")
                a(f"v_cvt_pk_bf16_f32 v{qb+k}, v{lo}, v{hi}")
            a(f"v_mfma_f32_16x16x32_bf16 v[{T+4+4*g}:{T+7+4*g}], v[{KZR+4*g}:{KZR+4*g+3}], v[{qb}:{qb+3}], 0")
    for g in range(2):
        post(T+4+4*g, (CC, CC1)[g])
    if not hoist: state_init()
    half_sw = (NT // 2) if not blocked else None
    if blocked:
        a("s_cmp_lt_u32 s41, 16")
        a("s_cbranch_scc1 L_g0")
        for k in range(4): a(f"v_mov_b32 v{QB+k}, v{QB1+k}")
        a(f"v_mov_b32 v{CC}, v{CC1}")
        a("L_g0:")
    a(f"v_mov_b32 v{CK}, v{CC}")
    a("s_mov_b32 s42, 0")
    full = a
    def filt(text):
        op = text.split()[0]
        if strip >= 1 and op == "v_cvt_f32_i32": return
        if strip >= 2 and op in ("v_cvt_pk_bf16_f32", "v_mfma_f32_16x16x32_bf16", "v_cndmask_b32", "v_add_f32_dpp"): return
        if strip >= 3 and op.startswith("v_") and op not in ("v_add_u32", "v_mov_b32", "v_subrev_u32"): return
        full(text)
    a = filt
    if align: a(f".p2align {align}")
    a("L_kloop:")
    if half_sw is not None:
        a(f"s_cmp_eq_u32 s42, {half_sw}")
        a("s_cbranch_scc0 L_nosw")
        for k in range(4): a(f"v_mov_b32 v{QB+k}, v{QB1+k}")
        a(f"v_mov_b32 v{CK}, v{CC1}")
        a("L_nosw:")
    for pi in range(U):
        for e in range(8):
            r = RB + 64*pi + 8*e
            ta, td, pd = TA[e&1], TD[e&1], TD[(e-1)&1]
            a(f"s_waitcnt vmcnt({2*(d-1)})")
            if first: issue(8*pi + e + d, True)
            for x in range(8): a(f"v_cvt_f32_i32 v{r+x}, v{r+x}")
            if first and kfill and e > 0:
                a(f"v_cndmask_b32 v{vT}, v{pd}, v{pd+1}, s[44:45]")
                a(f"v_cndmask_b32 v{vT+1}, v{pd+2}, v{pd+3}, s[44:45]")
                a(f"v_cvt_pk_bf16_f32 v{ta}, v{r}, v{r+1}")
                a(f"v_cvt_pk_bf16_f32 v{ta+1}, v{r+2}, v{r+3}")
                a(f"v_add_f32_dpp v{vT}, v{vT+1}, v{vT} quad_perm:[2,3,0,1] row_mask:0xf bank_mask:0xf")
                a(f"v_cvt_pk_bf16_f32 v{ta+2}, v{r+4}, v{r+5}")
                a(f"v_cvt_pk_bf16_f32 v{ta+3}, v{r+6}, v{r+7}")
                a(f"v_add_f32_dpp v{S+e-1}, v{vT}, v{vT} quad_perm:[1,0,3,2] row_mask:0xf bank_mask:0xf")
                if e >= 2: a(f"v_max_f32 v{vT+2}, v{vT+2}, v{S+e-2}")
                else: a(f"v_mov_b32 v{vT+2}, 0xff800000")
            else:
                if e > 0:
                    a(f"v_cndmask_b32 v{vT}, v{pd}, v{pd+1}, s[44:45]")
                    a(f"v_cndmask_b32 v{vT+1}, v{pd+2}, v{pd+3}, s[44:45]")
                a(f"v_cvt_pk_bf16_f32 v{ta}, v{r}, v{r+1}")
                a(f"v_cvt_pk_bf16_f32 v{ta+1}, v{r+2}, v{r+3}")
                if e > 0: a(f"v_add_f32_dpp v{vT}, v{vT+1}, v{vT} quad_perm:[2,3,0,1] row_mask:0xf bank_mask:0xf")
                a(f"v_cvt_pk_bf16_f32 v{ta+2}, v{r+4}, v{r+5}")
                a(f"v_cvt_pk_bf16_f32 v{ta+3}, v{r+6}, v{r+7}")
                if e > 0: a(f"v_add_f32_dpp v{S+e-1}, v{vT}, v{vT} quad_perm:[1,0,3,2] row_mask:0xf bank_mask:0xf")
            if not first: issue(8*pi + e + d, True)
            a(f"v_mfma_f32_16x16x32_bf16 v[{td}:{td+3}], v[{ta}:{ta+3}], v[{QB}:{QB+3}], 0")
        t0 = vT+2
        pd = TD[1]
        if first and kfill:
            a(f"ds_write_b128 v{vSs}, v[{S}:{S+3}]")
            a(f"v_max_f32 v{t0}, v{t0}, v{S+6}")
            a("s_nop 5")
        else:
            a(f"v_max3_f32 v{t0}, v{S}, v{S+1}, v{S+2}")
            a(f"ds_write_b128 v{vSs}, v[{S}:{S+3}]")
            a(f"v_max3_f32 v{t0}, v{t0}, v{S+3}, v{S+4}")
            a(f"v_max3_f32 v{t0}, v{t0}, v{S+5}, v{S+6}")
            a("s_nop 3")
        a(f"v_cndmask_b32 v{vT}, v{pd}, v{pd+1}, s[44:45]")
        a(f"v_cndmask_b32 v{vT+1}, v{pd+2}, v{pd+3}, s[44:45]")
        a(f"v_sub_f32 v{t0}, v{t0}, v{CK}")
        a(f"v_max_f32 v{MM}, v{MM}, v{t0}")
        a(f"v_add_f32_dpp v{vT}, v{vT+1}, v{vT} quad_perm:[2,3,0,1] row_mask:0xf bank_mask:0xf")
        a("s_nop 1")
        a(f"v_add_f32_dpp v{S+7}, v{vT}, v{vT} quad_perm:[1,0,3,2] row_mask:0xf bank_mask:0xf")
        a(f"v_sub_f32 v{t0}, v{S+7}, v{CK}")
        a(f"ds_write_b128 v{vSs}, v[{S+4}:{S+7}] offset:1024")
        a(f"v_max_f32 v{MM}, v{MM}, v{t0}")
        a(f"v_add_u32 v{vSs}, 2048, v{vSs}")
    a(f"s_add_u32 s42, s42, {U}")
    a(f"s_cmp_lt_u32 s42, {NT}")
    a("s_cbranch_scc1 L_kloop")
    stamp()
    a(f"v_subrev_u32 v{vSs}, {NT*2048}, v{vSs}")
    a(f"v_mov_b32 v{CK}, v{CC}")
    a(f"v_mov_b32 v{vT}, v{MM}")
    a(f"ds_read_b128 v[{S}:{S+3}], v{vSs}")
    a(f"ds_read_b128 v[{S+4}:{S+7}], v{vSs} offset:1024")
    a(f"v_permlane16_swap_b32 v{MM}, v{vT}")
    a(f"v_max_f32 v{MM}, v{MM}, v{vT}")
    a(f"ds_read_b128 v[{VS}:{VS+3}], v{vSa}")
    a(f"v_mov_b32 v{vT}, v{MM}")
    a(f"ds_read_b128 v[{VZ}:{VZ+3}], v{vSa} offset:1024")
    a(f"v_add_u32 v{vSs}, 2048, v{vSs}")
    a(f"v_permlane32_swap_b32 v{MM}, v{vT}")
    a(f"v_max_f32 v{MM}, v{MM}, v{vT}")
    if not accpro:
        for r in range(ACC, ACC+36): a(f"v_mov_b32 v{r}, 0")
    a("s_mov_b32 s42, 0")
    if align: a(f".p2align {align}")
    a("L_vloop:")
    for pi in range(U):
        if pi == 0:
            a(f"s_cmp_eq_u32 s42, {max(NT-max(chk,U), 0) // U * U}")
            a("s_cbranch_scc0 L_nochk")
            a(f"s_lshl_b32 s43, s40, 5")
            a(f"v_mov_b32 v{vT}, s43")
            if not fspin: a(f"global_load_dword v{vChk}, v{vT}, s[20:21] sc1")
            a("L_nochk:")
        mc = FB
        a(f"v_add_f32 v{mc}, v{MM}, v{CK}")
        a("s_waitcnt lgkmcnt(0)")
        for k in range(8): a(f"v_sub_f32 v{S+k}, v{S+k}, v{mc}")
        for k in range(4):
            a(f"v_exp_f32 v{S+2*k}, v{S+2*k}")
            a(f"v_lshlrev_b32 v{T+2*k}, 16, v{VS+k}")
            a(f"v_exp_f32 v{S+2*k+1}, v{S+2*k+1}")
            a(f"v_and_b32 v{T+2*k+1}, 0xffff0000, v{VS+k}")
        for k in range(4):
            a(f"v_mul_f32 v{T+2*k}, v{T+2*k}, v{S+2*k}")
            a(f"v_mul_f32 v{T+2*k+1}, v{T+2*k+1}, v{S+2*k+1}")
            a(f"v_add_f32 v{LL}, v{LL}, v{S+2*k}")
            a(f"v_cvt_pk_bf16_f32 v{W+k}, v{T+2*k}, v{T+2*k+1}")
            a(f"v_add_f32 v{LL}, v{LL}, v{S+2*k+1}")
        a(f"v_add_u32 v{vSa}, 64, v{vSa}")
        a(f"ds_read_b128 v[{S}:{S+3}], v{vSs}")
        a(f"v_mfma_f32_16x16x32_bf16 v[{ACZ}:{ACZ+3}], v[{W}:{W+3}], v[{VZ}:{VZ+3}], v[{ACZ}:{ACZ+3}]")
        a(f"ds_read_b128 v[{S+4}:{S+7}], v{vSs} offset:1024")
        a(f"ds_read_b128 v[{VS}:{VS+3}], v{vSa}")
        for k in range(4):
            r0 = RB + 64*pi + 8*(2*k)
            r1 = r0 + 8
            a(f"s_waitcnt vmcnt({2*(d-2)})")
            last = skipl and first and pi == U - 1 and k == 3
            if last:
                a(f"s_cmp_eq_u32 s42, {NT - U}")
                a("s_cbranch_scc1 L_skipl")
            if first: issue(8*pi + 2*k + d, False); issue(8*pi + 2*k + 1 + d, False)
            if last: a("L_skipl:")
            for x in range(8):
                a(f"v_cvt_f32_i32 v{r0+x}, v{r0+x}")
                a(f"v_cvt_f32_i32 v{r1+x}, v{r1+x}")
            if k == 0:
                a(f"ds_read_b128 v[{VZ}:{VZ+3}], v{vSa} offset:1024")
                a(f"v_add_u32 v{vSs}, 2048, v{vSs}")
            for half in range(2):
                for c in range(4):
                    a(f"v_cvt_pk_bf16_f32 v{T+16*half+4*c+k}, v{r0+4*half+c}, v{r1+4*half+c}")
            if not first: issue(8*pi + 2*k + d, False); issue(8*pi + 2*k + 1 + d, False)
        for half in range(2):
            for c in range(4):
                dd = ACC + 16*half + 4*c
                a(f"v_mfma_f32_16x16x32_bf16 v[{dd}:{dd+3}], v[{W}:{W+3}], v[{T+16*half+4*c}:{T+16*half+4*c+3}], v[{dd}:{dd+3}]")
        if half_sw is not None and pi == U - 1:
            a(f"s_cmp_eq_u32 s42, {half_sw - U}")
            a("s_cbranch_scc0 L_nosw2")
            a(f"v_mov_b32 v{CK}, v{CC1}")
            a("L_nosw2:")
    a(f"s_add_u32 s42, s42, {U}")
    a(f"s_cmp_lt_u32 s42, {NT}")
    a("s_cbranch_scc1 L_vloop")
    stamp()
    a = full
    if cut == "notail": a("s_branch L_send")
    KEEP, GIVE, RECV, STQ, SP = S, S + 4, T, T + 4, W
    a(f"v_mov_b32 v{vT}, v{LL}")
    a(f"v_readfirstlane_b32 s48, v{vChk}")
    a(f"v_permlane16_swap_b32 v{LL}, v{vT}")
    a(f"v_add_f32 v{LL}, v{LL}, v{vT}")
    a(f"v_mov_b32 v{vT}, v{LL}")
    a("s_cmp_eq_u32 s50, 0")
    a("s_waitcnt lgkmcnt(0)")
    a(f"v_permlane32_swap_b32 v{LL}, v{vT}")
    a(f"v_add_f32 v{SP+1}, v{LL}, v{vT}")
    a(f"v_mov_b32 v{SP}, v{MM}")
    a("s_cbranch_scc1 L_w0")
    for c in range(4): a(f"v_sub_f32 v{GIVE+c}, v{ACC+4*c}, v{ACZ}")
    for c in range(4): a(f"v_sub_f32 v{KEEP+c}, v{ACC+16+4*c}, v{ACZ}")
    a("s_branch L_wx")
    a("L_w0:")
    for c in range(4): a(f"v_sub_f32 v{GIVE+c}, v{ACC+16+4*c}, v{ACZ}")
    for c in range(4): a(f"v_sub_f32 v{KEEP+c}, v{ACC+4*c}, v{ACZ}")
    a("L_wx:")
    a(f"ds_write_b128 v{AXo}, v[{GIVE}:{GIVE+3}]")
    a("s_mov_b64 exec, 0x1111")
    a(f"ds_write_b64 v{AXs}, v[{SP}:{SP+1}]")
    a("s_mov_b64 exec, -1")
    a("s_and_b32 s55, s48, 0xff")
    a("s_waitcnt lgkmcnt(0)")
    a("s_barrier")
    a(f"ds_read_b128 v[{STQ}:{STQ+3}], v{AD1}")
    a(f"ds_read_b128 v[{RECV}:{RECV+3}], v{AXi}")
    a("s_mov_b32 s43, 0xfffffffe")
    a("s_waitcnt lgkmcnt(1)")
    a(f"v_max_f32 v{vT}, v{STQ}, v{STQ+2}")
    a(f"v_sub_f32 v{STQ}, v{STQ}, v{vT}")
    a(f"v_sub_f32 v{STQ+2}, v{STQ+2}, v{vT}")
    a(f"v_exp_f32 v{STQ}, v{STQ}")
    a(f"v_exp_f32 v{STQ+2}, v{STQ+2}")
    a(f"v_min_u32 v{SP}, s43, v{vT}")
    a("s_cmp_eq_u32 s50, 0")
    a(f"v_mul_f32 v{vT+1}, v{STQ}, v{STQ+1}")
    a(f"v_fmac_f32 v{vT+1}, v{STQ+2}, v{STQ+3}")
    a("s_cbranch_scc1 L_f0")
    a(f"v_swap_b32 v{STQ}, v{STQ+2}")
    a("L_f0:")
    a(f"v_min_u32 v{SP+1}, s43, v{vT+1}")
    a("s_waitcnt lgkmcnt(0)")
    for c in range(4): a(f"v_mul_f32 v{KEEP+c}, v{KEEP+c}, v{STQ}")
    for c in range(4): a(f"v_fmac_f32 v{KEEP+c}, v{RECV+c}, v{STQ+2}")
    for c in range(4): a(f"v_min_u32 v{KEEP+c}, s43, v{KEEP+c}")
    a("s_cmp_ge_u32 s55, 32")
    a("s_cbranch_scc1 L_started")
    a("s_mov_b32 s52, 0")
    a("s_lshl_b32 s43, s40, 5")
    a(f"v_mov_b32 v{vT}, s43")
    a("L_spin0:")
    a(f"global_load_dword v{vChk}, v{vT}, s[20:21] sc1")
    a("s_add_u32 s52, s52, 1")
    a("s_waitcnt vmcnt(0)")
    a(f"v_readfirstlane_b32 s48, v{vChk}")
    a(f"s_cmp_gt_u32 s52, {maxspin}")
    a("s_cbranch_scc1 L_started")
    a("s_and_b32 s55, s48, 0xff")
    a("s_cmp_ge_u32 s55, 32")
    a("s_cbranch_scc0 L_spin0")
    a("L_started:")
    if force == "slow": a("s_branch L_pslow")
    a("s_cmp_eq_u32 s48, s54")
    a("s_cbranch_scc0 L_pslow")
    a(f"global_store_dwordx4 v{AD0}, v[{KEEP}:{KEEP+3}], s[22:23]")
    a("s_cmp_eq_u32 s50, 0")
    a("s_cbranch_scc0 L_pdone")
    a("s_mov_b32 exec_lo, 0x00010001"); a("s_mov_b32 exec_hi, 0x00010001")
    a(f"global_store_dwordx2 v{ASt}, v[{SP}:{SP+1}], s[22:23]")
    a("s_branch L_pdone")
    a("L_pslow:")
    a(f"global_store_dwordx4 v{AD0}, v[{KEEP}:{KEEP+3}], s[22:23] sc1")
    a("s_cmp_eq_u32 s50, 0")
    a("s_cbranch_scc0 L_pdone")
    a("s_mov_b32 exec_lo, 0x00010001"); a("s_mov_b32 exec_hi, 0x00010001")
    a(f"global_store_dwordx2 v{ASt}, v[{SP}:{SP+1}], s[22:23] sc1")
    a("L_pdone:")
    a("s_mov_b64 exec, -1")
    stamp()
    if cut == "pub": a("s_branch L_send")
    PD, PS = T + 8, T + 12
    mx, t, f0, ls = vT+2, vT+1, vT+3, vT+5
    a("s_mov_b32 s52, 0")
    a("L_poll:")
    a(f"global_load_dwordx2 v[{PS}:{PS+1}], v{APs}, s[22:23] sc1")
    a(f"global_load_dwordx4 v[{PD}:{PD+3}], v{APd}, s[22:23] sc1")
    a("s_add_u32 s52, s52, 1")
    a(f"s_cmp_gt_u32 s52, {maxspin}")
    a("s_cbranch_scc1 L_polled0")
    a("s_waitcnt vmcnt(1)")
    a(f"v_max_u32 v{vT}, v{PS}, v{PS+1}")
    a(f"v_max_f32_dpp v{mx}, v{PS}, v{PS} row_ror:2 row_mask:0xf bank_mask:0xf")
    a("s_waitcnt vmcnt(0)")
    a(f"v_max3_u32 v{vT}, v{vT}, v{PD}, v{PD+1}")
    a(f"v_max_f32_dpp v{mx}, v{mx}, v{mx} row_ror:4 row_mask:0xf bank_mask:0xf")
    a(f"v_max3_u32 v{vT}, v{vT}, v{PD+2}, v{PD+3}")
    a(f"v_cmp_eq_u32 vcc, -1, v{vT}")
    a(f"v_max_f32_dpp v{mx}, v{mx}, v{mx} row_ror:8 row_mask:0xf bank_mask:0xf")
    a("s_nop 3")
    a("s_cbranch_vccnz L_poll")
    a("L_polled0:")
    a("s_waitcnt vmcnt(0)")
    stamp()
    X = T + 16
    a(f"v_mov_b32 v{t}, v{mx}")
    a(f"v_permlane16_swap_b32 v{mx}, v{t}")
    a(f"v_max_f32 v{mx}, v{mx}, v{t}")
    a(f"v_mov_b32 v{t}, v{mx}")
    a(f"v_permlane32_swap_b32 v{mx}, v{t}")
    a(f"v_max_f32 v{mx}, v{mx}, v{t}")
    a(f"v_sub_f32 v{f0}, v{PS}, v{mx}")
    a(f"v_exp_f32 v{f0}, v{f0}")
    R = [PS+1, PD, PD+1, PD+2, PD+3]
    for x in R: a(f"v_mul_f32 v{x}, v{x}, v{f0}")
    if rs:
        Lr = PS + 1
        a(f"v_mov_b32 v{X}, v{Lr}")
        a(f"v_permlane16_swap_b32 v{PD}, v{PD+1}")
        a(f"v_permlane16_swap_b32 v{PD+2}, v{PD+3}")
        a(f"v_permlane16_swap_b32 v{Lr}, v{X}")
        a(f"v_add_f32 v{PD}, v{PD}, v{PD+1}")
        a(f"v_add_f32 v{PD+2}, v{PD+2}, v{PD+3}")
        a(f"v_add_f32 v{Lr}, v{Lr}, v{X}")
        a(f"v_mov_b32 v{X}, v{Lr}")
        a(f"v_permlane32_swap_b32 v{PD}, v{PD+2}")
        a(f"v_permlane32_swap_b32 v{Lr}, v{X}")
        a(f"v_add_f32 v{PD}, v{PD}, v{PD+2}")
        a(f"v_add_f32 v{Lr}, v{Lr}, v{X}")
        for r in (2, 4, 8):
            a(f"v_add_f32_dpp v{PD}, v{PD}, v{PD} row_ror:{r} row_mask:0xf bank_mask:0xf")
            a(f"v_add_f32_dpp v{Lr}, v{Lr}, v{Lr} row_ror:{r} row_mask:0xf bank_mask:0xf")
        a(f"v_rcp_f32 v{ls}, v{Lr}")
        a("s_mov_b32 exec_lo, 0x00030003"); a("s_mov_b32 exec_hi, 0x00030003")
        a(f"v_mul_f32 v{PD}, v{PD}, v{ls}")
        a(f"v_cvt_pk_bf16_f32 v{PD}, v{PD}, v{PD}")
        a(f"global_store_short v{AOut}, v{PD}, s[18:19] {outf}")
    else:
        for r in (2, 4, 8):
            for x in R: a(f"v_add_f32_dpp v{x}, v{x}, v{x} row_ror:{r} row_mask:0xf bank_mask:0xf")
        for sw in ("v_permlane16_swap_b32", "v_permlane32_swap_b32"):
            for k, x in enumerate(R): a(f"v_mov_b32 v{X+k}, v{x}")
            for k, x in enumerate(R): a(f"{sw} v{x}, v{X+k}")
            for k, x in enumerate(R): a(f"v_add_f32 v{x}, v{x}, v{X+k}")
        a(f"v_rcp_f32 v{ls}, v{PS+1}")
        a("s_mov_b64 exec, 3")
        for c in range(4): a(f"v_mul_f32 v{PD+c}, v{PD+c}, v{ls}")
        a(f"v_cvt_pk_bf16_f32 v{PD}, v{PD}, v{PD+1}")
        a(f"v_cvt_pk_bf16_f32 v{PD+1}, v{PD+2}, v{PD+3}")
        a(f"global_store_dwordx2 v{AOut}, v[{PD}:{PD+1}], s[18:19] {outf}")
    stamp()
    a("L_send:")
    nstream = nst[0]
    stamp_out(nstream)
    a("s_endpgm")
    nst[0] = 1
    a("L_helper:")
    vPd, vSt, MK = 20, 21, 24
    a("s_lshl_b32 s43, s40, 5"); a("s_add_u32 s43, s43, s41"); a("s_lshl_b32 s43, s43, 11"); a(f"s_add_u32 s43, s43, {A2A_DATA}")
    a(f"v_lshlrev_b32 v{vPd}, 4, v{vL}")
    a(f"v_add_u32 v{vPd}, s43, v{vPd}")
    a(f"v_lshlrev_b32 v{vSt}, 8, v{vT}")
    a("s_lshl_b32 s43, s40, 10"); a("s_lshl_b32 s48, s41, 3"); a("s_add_u32 s43, s43, s48"); a(f"s_add_u32 s43, s43, {A2A_STAT}")
    a(f"v_add_u32 v{vSt}, s43, v{vSt}")
    for k in range(4): a(f"v_mov_b32 v{MK+k}, -1")
    a("s_getreg_b32 s53, hwreg(HW_REG_XCC_ID, 0, 4)")
    a("s_mul_i32 s54, s53, s53")
    a("s_lshl_b32 s54, s54, 18")
    a("s_lshl_b32 s53, s53, 8")
    a("s_add_u32 s53, s53, s54")
    a("s_add_u32 s53, s53, 1")
    a("s_lshl_b32 s43, s40, 5")
    a(f"v_mov_b32 v28, s43")
    a(f"v_mov_b32 v29, s53")
    a("s_waitcnt lgkmcnt(0)")
    stamp()
    if nohelp: a("s_branch L_hend")
    for k in range(dly):
        a("v_mov_b32 v30, 0"); a("global_load_dword v31, v30, s[4:5] sc1"); a("s_waitcnt vmcnt(0)")
    for k in range(2):
        if mkonly != "stat": a(f"global_store_dwordx4 v{vPd}, v[{MK}:{MK+3}], s[22:23] offset:{1024*k} {mkf}")
    a("s_mov_b32 exec_lo, 0x00010001"); a("s_mov_b32 exec_hi, 0x00010001")
    a(f"global_store_dwordx2 v{vSt}, v[{MK}:{MK+1}], s[22:23] sc1")
    a("s_waitcnt vmcnt(0)")
    a("s_mov_b64 exec, 1")
    a("global_atomic_add v28, v29, s[20:21] sc1")
    stamp()
    a("L_hend:")
    stamp_out(nst[0])
    a("L_end:")
    a("s_endpgm")
    body = a.finalize()
    txt = HEAD + f"; @launch grid=(256,1,1) block=({64*(NS+1)},1,1) lds={LDS}\n"
    txt += f'.amdgcn_target "amdgcn-amd-amdhsa--gfx950"\n.text\n.globl {KN}\n.p2align 8\n.type {KN},@function\n{KN}:\n' + body
    txt += '.section .rodata,"a"\n.p2align 6\n' + kd(KN, max(NV, 120))
    open(name + ".s", "w").write(txt)
    build(name + ".s")
    if out: print(name, "pads:", a.pads, "stamps:", nstream, nst[0], "vgprs", NV, "lds", LDS)
if __name__ == "__main__":
    V = eval(open(sys.argv[1]).read())
    names = []
    for nm, v in V:
        gen(nm, **v); names.append(nm)
    print(" ".join(n + ".co" for n in names))
```
